```python
import torch

def _softmax(x, axis=-1):
    return torch.softmax(x, dim=axis)
def _gelu(x):
    return torch.nn.functional.gelu(x, approximate="tanh")
def _silu(x):
    return torch.nn.functional.silu(x)
def _sigmoid(x):
    return torch.sigmoid(x)
def _layernorm(x, axis=-1, eps=1e-5):
    m = x.mean(dim=axis, keepdim=True)
    v = x.var(dim=axis, keepdim=True, unbiased=False)
    return (x - m) / torch.sqrt(v + eps)
def _scatter_add(tgt, idx, src, axis=0):
    return tgt.clone().index_add_(axis, idx, src)
def _segment_sum(src, seg, n):
    out = torch.zeros((n,) + src.shape[1:], dtype=src.dtype)
    return out.index_add_(0, seg, src)
def _pad(x, pw):
    flat = tuple(v for pair in reversed(pw) for v in pair)
    return torch.nn.functional.pad(x, flat)

kernel_name = 'parallel_sum__ssm_conv_s4__dense_activation_relu__prompt'

def setup_inputs():

    _w = (lambda a: (lambda t: t.to(torch.bfloat16) if t.is_floating_point() else t)(torch.as_tensor(a)))
    def _A_setup():
        B, L, D, N = 1, 2048, 512, 128
        A_re = -(lambda _x: torch.exp(torch.as_tensor(_x)))((lambda *s: torch.randn(*s, dtype=torch.bfloat16) * 3.2)(D, N))
        A_im = torch.pi * (lambda *s: torch.randn(*s, dtype=torch.bfloat16) * 0.1)(D, N)
        B_re = (lambda *s: torch.randn(*s, dtype=torch.bfloat16) * 0.4)(D, N)
        B_im = (lambda *s: torch.randn(*s, dtype=torch.bfloat16) * 0.4)(D, N)
        C_re = (lambda *s: torch.randn(*s, dtype=torch.bfloat16) * 0.4)(D, N)
        C_im = (lambda *s: torch.randn(*s, dtype=torch.bfloat16) * 0.4)(D, N)
        log_dt = (lambda *s: torch.randn(*s, dtype=torch.bfloat16) * 0.1)(D) * 0.5 - 4.0
        Dskip = (lambda *s: torch.randn(*s, dtype=torch.bfloat16) * 0.2)(D)
        return {
            "u": _w((lambda *s: torch.randn(*s, dtype=torch.bfloat16) * 0.05)(B, L, D)),
            "A_re": _w(A_re),
            "A_im": _w(A_im),
            "B_re": _w(B_re),
            "B_im": _w(B_im),
            "C_re": _w(C_re),
            "C_im": _w(C_im),
            "log_dt": _w(log_dt),
            "Dskip": _w(Dskip),
        }
    _A_in = _A_setup()

    def _B_setup():
        B, S, D, Dff = 1, 2048, 512, 1376
        return {
            "x": _w((lambda *s: torch.randn(*s, dtype=torch.bfloat16) * 0.05)(B, S, D)),
            "w1": _w((lambda *s: torch.randn(*s, dtype=torch.bfloat16) * 0.05)(D, Dff)),
            "w2": _w((lambda *s: torch.randn(*s, dtype=torch.bfloat16) * 0.05)(Dff, D)),
        }
    _B_in = _B_setup()

    return {
        "A_u": _A_in["u"],
        "A_A_re": _A_in["A_re"],
        "A_A_im": _A_in["A_im"],
        "A_B_re": _A_in["B_re"],
        "A_B_im": _A_in["B_im"],
        "A_C_re": _A_in["C_re"],
        "A_C_im": _A_in["C_im"],
        "A_log_dt": _A_in["log_dt"],
        "A_Dskip": _A_in["Dskip"],
        "B_x": _B_in["x"],
        "B_w1": _B_in["w1"],
        "B_w2": _B_in["w2"],
    }

def reference(A_u, A_A_re, A_A_im, A_B_re, A_B_im, A_C_re, A_C_im, A_log_dt, A_Dskip, B_x, B_w1, B_w2):
    def _A_ref(u, A_re, A_im, B_re, B_im, C_re, C_im, log_dt, Dskip):
        Bsz, L, D = u.shape
        dt = torch.exp(log_dt)[:, None]
        A = A_re + 1j * A_im
        Bc = B_re + 1j * B_im
        Cc = C_re + 1j * C_im
        logdA = dt * A
        dB = dt * Bc
        l = (lambda x, dt: x.to(dt))(torch.arange(L), A_re.dtype)
        P = torch.exp(logdA[:, :, None] * l[None, None, :])
        K = torch.einsum("dn,dnl,dn->dl", Cc, P, dB).real
        L2 = 2 * L
        Kp = _pad(K, ((0, 0), (0, L)))
        up = (lambda x, *d: x.permute(*d))(u, 0, 2, 1)
        up = _pad(up, ((0, 0), (0, 0), (0, L)))
        Kf = (lambda x, axes=(-2,-1): torch.fft.rfft2(x.float(), dim=axes))(Kp[:, None, :], axes=(-2, -1))
        Uf = (lambda x, axes=(-2,-1): torch.fft.rfft2(x.float(), dim=axes))(up[:, :, None, :], axes=(-2, -1))
        Yf = Uf * Kf[None, :, :, :]
        y = (lambda x, s, axes=(-2,-1): torch.fft.irfft2(x, s=s, dim=axes).to(torch.bfloat16))(Yf, (1, L2), axes=(-2, -1))[:, :, 0, :L]
        y = (lambda x, *d: x.permute(*d))(y, 0, 2, 1) + u * Dskip[None, None, :]
        return y

    def _B_ref(x, w1, w2):
        h = torch.einsum("bsd,df->bsf", x, w1)
        zero = torch.zeros_like(h)
        h = torch.maximum(h, zero)
        return torch.einsum("bsf,fd->bsd", h, w2)

    x = A_u
    xn = _layernorm(x, axis=-1)
    return x + _A_ref(xn, A_A_re, A_A_im, A_B_re, A_B_im, A_C_re, A_C_im, A_log_dt, A_Dskip) + _B_ref(xn, B_w1, B_w2)
```

```python
import re

TRANS = ("v_exp_f32", "v_log_f32", "v_rcp_f32", "v_rsq_f32", "v_sqrt_f32", "v_sin_f32", "v_cos_f32",
         "v_rcp_iflag_f32")

REG_RE = re.compile(r"\b([vas])\[(\d+):(\d+)\]|\b([vas])(\d+)\b|\b(vcc|exec|m0|scc)\b")


def regs_of(tok):
    out = []
    for m in REG_RE.finditer(tok):
        if m.group(1):
            for i in range(int(m.group(2)), int(m.group(3)) + 1):
                out.append((m.group(1), i))
        elif m.group(4):
            out.append((m.group(4), int(m.group(5))))
        else:
            g = m.group(6)
            if g == "vcc":
                out += [("s", 106), ("s", 107)]
            elif g == "exec":
                out += [("s", 126), ("s", 127)]
            elif g == "m0":
                out.append(("s", 124))
    return out


def mfma_passes(mn):
    if "32x32x16" in mn or "32x32x8" in mn:
        return 8, "xdl"
    if "16x16x32" in mn or "16x16x16" in mn:
        return 4, "xdl"
    if mn == "v_mfma_f32_16x16x4_f32":
        return 8, "sgemm"
    if mn == "v_mfma_f32_32x32x2_f32":
        return 16, "sgemm"
    raise ValueError(mn)


class Inst:
    __slots__ = ("text", "mn", "kind", "dst", "src", "pos", "srcc", "dpp", "passes", "mclass", "wide_store")


class Asm:
    def __init__(self):
        self.lines = []
        self.hist = []
        self.pos = 0

    def raw(self, s):
        self.lines.append(s)

    def comment(self, s):
        self.lines.append("    ; " + s)

    def label(self, name):
        self.lines.append(name + ":")

    def flush_hazards(self, n=20):
        while n > 0:
            k = min(n, 16)
            self._emit_raw("s_nop %d" % (k - 1), k)
            n -= k

    def _emit_raw(self, text, states=1):
        self.lines.append("    " + text)
        self.pos += states

    def parse(self, text):
        it = Inst()
        it.text = text
        parts = text.split(None, 1)
        mn = parts[0]
        it.mn = mn
        ops = parts[1] if len(parts) > 1 else ""
        opl = [o.strip() for o in ops.split(",")] if ops else []
        it.dpp = ("row_shr" in text or "row_bcast" in text or "quad_perm" in text or "row_shl" in text
                  or "row_ror" in text or "row_mirror" in text or "row_half_mirror" in text or "wave_" in text or "row_newbcast" in text)
        it.srcc = []
        it.passes = 0
        it.mclass = None
        it.wide_store = False
        dst, src = [], []
        if mn.startswith("v_mfma"):
            it.kind = "mfma"
            it.passes, it.mclass = mfma_passes(mn)
            dst = regs_of(opl[0])
            src = regs_of(opl[1]) + regs_of(opl[2]) + regs_of(opl[3])
            it.srcc = regs_of(opl[3])
        elif mn.startswith("v_"):
            it.kind = "valu"
            if mn.startswith("v_cmp"):
                dst = regs_of(opl[0])
                if mn.startswith("v_cmpx"):
                    dst += [("s", 126), ("s", 127)]
                for o in opl[1:]:
                    src += regs_of(o)
            elif mn.startswith(("v_add_co", "v_sub_co", "v_addc_co", "v_subb_co", "v_subrev_co")):
                dst = regs_of(opl[0]) + regs_of(opl[1])
                for o in opl[2:]:
                    src += regs_of(o)
            elif mn.startswith("v_permlane") and "swap" in mn:
                dst = regs_of(opl[0]) + regs_of(opl[1])
                src = list(dst)
            else:
                dst = regs_of(opl[0])
                for o in opl[1:]:
                    src += regs_of(o)
                if mn.startswith(("v_fmac", "v_mac", "v_dot2c", "v_pk_fmac")) or it.dpp or mn.startswith("v_writelane"):
                    src += dst
                if mn.startswith("v_cndmask") and len(opl) == 3:
                    src += [("s", 106), ("s", 107)]
        elif mn.startswith(("buffer_", "global_", "flat_", "scratch_")):
            it.kind = "vmem"
            is_store = "store" in mn or ("atomic" in mn)
            is_lds = bool(re.search(r"\blds\b", text)) or "load_lds" in mn
            if is_store or is_lds:
                for o in opl:
                    src += regs_of(o)
                if is_lds:
                    src.append(("s", 124))
                if "x4" in mn or "x3" in mn:
                    it.wide_store = is_store
            else:
                dst = regs_of(opl[0])
                for o in opl[1:]:
                    src += regs_of(o)
        elif mn.startswith("ds_"):
            it.kind = "ds"
            if mn.startswith(("ds_write", "ds_add", "ds_max", "ds_min")) and "rtn" not in mn:
                for o in opl:
                    src += regs_of(o)
            else:
                dst = regs_of(opl[0])
                for o in opl[1:]:
                    src += regs_of(o)
                if "d16" in mn:
                    src += dst
        elif mn.startswith("s_"):
            it.kind = "salu"
            if mn.startswith(("s_waitcnt", "s_barrier", "s_nop", "s_branch", "s_cbranch", "s_endpgm", "s_setprio",
                              "s_sleep")):
                pass
            elif mn.startswith("s_cmp"):
                for o in opl:
                    src += regs_of(o)
            else:
                if opl:
                    dst = regs_of(opl[0])
                    for o in opl[1:]:
                        src += regs_of(o)
                if "saveexec" in mn:
                    dst += [("s", 126), ("s", 127)]
        else:
            raise ValueError("unknown instruction " + text)
        it.dst = dst
        it.src = src
        return it

    def need(self, prev, cur):
        n = 0
        pd = set(prev.dst)
        cs = set(cur.src)
        cd = set(cur.dst)
        raw = pd & cs
        waw = pd & cd
        if prev.kind == "valu":
            vraw = {r for r in raw if r[0] in "va"}
            sraw = {r for r in raw if r[0] == "s"}
            if vraw:
                if cur.kind == "mfma":
                    n = max(n, 2)
                if cur.kind == "valu":
                    if prev.mn in TRANS and cur.mn not in TRANS:
                        n = max(n, 1)
                    if cur.dpp:
                        n = max(n, 2)
                    if cur.mn.startswith(("v_readlane", "v_readfirstlane")):
                        n = max(n, 1)
                    if cur.mn.startswith("v_permlane"):
                        n = max(n, 2)
            if sraw:
                if cur.kind == "valu":
                    n = max(n, 2)
                    if cur.mn.startswith(("v_readlane", "v_writelane")):
                        n = max(n, 4)
                if cur.kind == "vmem":
                    n = max(n, 5)
                if cur.kind == "salu":
                    n = max(n, 2)
            if ("s", 126) in pd and cur.kind in ("mfma",):
                n = max(n, 4)
            if ("s", 126) in pd and cur.kind == "valu" and cur.dpp:
                n = max(n, 5)
        if prev.kind == "mfma":
            p = prev.passes
            if prev.mclass == "xdl":
                tab = {2: 5, 4: 8, 8: 12, 16: 20}
                tabc = {2: 4, 4: 6, 8: 10, 16: 18}
            else:
                tab = {2: 4, 4: 6, 8: 10, 16: 18}
                tabc = {2: 2, 4: 4, 8: 8, 16: 16}
            if cur.kind == "mfma":
                ab = set(cur.src) - set(cur.srcc)
                if pd & ab:
                    n = max(n, tab[p])
                if pd & set(cur.srcc):
                    if cur.srcc == prev.dst and cur.passes == prev.passes and cur.mclass == prev.mclass:
                        n = max(n, 2 if p == 2 else 0)
                    else:
                        n = max(n, tabc[p])
                elif waw:
                    n = max(n, tab[p])
            else:
                if raw or waw:
                    n = max(n, tab[p])
            if prev.mclass == "xdl" and cur.kind == "valu" and (set(prev.srcc) & cd):
                n = max(n, {2: 1, 4: 3, 8: 7, 16: 15}[p])
        if prev.kind == "vmem" and prev.wide_store:
            if set(prev.src) & cd and cur.kind in ("valu", "mfma", "vmem", "ds"):
                n = max(n, 2)
        if prev.kind == "salu" and ("s", 124) in pd:
            if cur.kind == "vmem" and ("s", 124) in cs:
                n = max(n, 1)
        return n

    def __call__(self, text):
        text = text.strip()
        if not text:
            return
        if "\n" in text:
            for l in text.split("\n"):
                self(l)
            return
        if text.startswith(";"):
            self.comment(text[1:])
            return
        code = text.split(";")[0].strip()
        it = self.parse(code)
        if it.mn == "s_nop":
            k = int(code.split()[1], 0) + 1
            self._emit_raw(code, k)
            return
        req = 0
        for prev in self.hist:
            d = self.pos - prev.pos - 1
            nd = self.need(prev, it)
            if nd - d > req:
                req = nd - d
        while req > 0:
            k = min(req, 16)
            self._emit_raw("s_nop %d" % (k - 1), k)
            req -= k
        it.pos = self.pos
        self._emit_raw(text)
        self.hist.append(it)
        if len(self.hist) > 40:
            self.hist.pop(0)

    def text(self):
        return "\n".join(self.lines) + "\n"
```

```python
import sys
import os
sys.path.insert(0, os.path.dirname(os.path.abspath(__file__)))
from asmlib import Asm

NAME = "parallel_sum__ssm_conv_s4__dense_activation_relu__prompt"
MB = 1 << 20
XN_OFF = 0
XNT_OFF = 2 * MB
KR_OFF = 4 * MB
KR_PITCH = 8320
AT_OFF = 9 * MB
H_OFF = 12 * MB
H_BYTES = 2048 * 2752

LOG2E = "0x3fb8aa3b"
INV2PI = "0x3e22f983"


def fhex(x):
    import struct
    return "0x%08x" % struct.unpack("<I", struct.pack("<f", x))[0]


def gen_kgen(a):
    a("; ---------------- K-gen ----------------")
    a("s_load_dwordx8 s[8:15], s[0:1], 8")
    a("s_load_dwordx4 s[16:19], s[0:1], 40")
    a("s_load_dwordx2 s[20:21], s[0:1], 56")
    a("s_load_dwordx2 s[22:23], s[0:1], 112")
    a("v_and_b32 v1, 63, v0")
    a("v_lshrrev_b32 v2, 6, v0")
    a("v_and_b32 v3, 15, v1")
    a("v_lshrrev_b32 v4, 4, v1")
    a("s_lshl_b32 s3, s2, 8")
    a("v_lshlrev_b32 v5, 6, v2")
    a("v_lshl_add_u32 v5, v4, 4, v5")
    a("v_add_u32 v5, s3, v5")
    a("s_lshl_b32 s4, s2, 1")
    a("v_mov_b32 v6, s4")
    a("s_waitcnt lgkmcnt(0)")
    a("global_load_dwordx4 v[8:11], v5, s[8:9]")
    a("global_load_dwordx4 v[12:15], v5, s[10:11]")
    a("global_load_dwordx4 v[16:19], v5, s[12:13]")
    a("global_load_dwordx4 v[20:23], v5, s[14:15]")
    a("global_load_dwordx4 v[24:27], v5, s[16:17]")
    a("global_load_dwordx4 v[28:31], v5, s[18:19]")
    a("global_load_ushort v7, v6, s[20:21]")
    a("v_lshrrev_b32 v32, 3, v3")
    a("v_and_b32 v33, 7, v3")
    a("v_lshl_add_u32 v32, v32, 7, v33")
    a("v_cvt_f32_u32 v32, v32")
    a("v_lshrrev_b32 v33, 2, v3")
    a("v_and_b32 v34, 3, v3")
    a("v_lshlrev_b32 v34, 1, v34")
    a("v_lshl_add_u32 v33, v33, 7, v34")
    a("v_add_u32 v33, 0x100, v33")
    a("v_subrev_u32 v34, 8, v3")
    a("v_lshrrev_b32 v34, 1, v34")
    a("v_and_b32 v35, 1, v3")
    a("v_lshlrev_b32 v35, 2, v35")
    a("v_lshl_add_u32 v34, v34, 7, v35")
    a("v_add_u32 v34, 0x200, v34")
    a("v_cmp_gt_u32 vcc, 8, v3")
    a("v_cndmask_b32 v33, v34, v33, vcc")
    a("v_cvt_f32_u32 v33, v33")
    a("v_lshlrev_b32 v34, 7, v3")
    a("v_add_u32 v34, 0x400, v34")
    a("v_cvt_f32_u32 v34, v34")
    a("v_lshlrev_b32 v35, 3, v3")
    a("v_cvt_f32_u32 v35, v35")
    for r in range(36, 48):
        a("v_mov_b32 v%d, 0" % r)
    a("s_mov_b32 s5, %s" % LOG2E)
    a("s_mov_b32 s6, %s" % INV2PI)
    a("s_waitcnt vmcnt(0)")
    a("v_lshlrev_b32 v7, 16, v7")
    a("v_mul_f32 v7, s5, v7")
    a("v_exp_f32 v7, v7")
    a("v_cvt_pk_bf16_f32 v7, v7, v7")
    a("v_lshlrev_b32 v7, 16, v7")
    for g in range(8):
        def ext(dst, base):
            r = base + (g >> 1)
            if g & 1:
                a("v_and_b32 v%d, 0xffff0000, v%d" % (dst, r))
            else:
                a("v_lshlrev_b32 v%d, 16, v%d" % (dst, r))
        ext(80, 8)
        ext(81, 12)
        ext(82, 16)
        ext(83, 20)
        ext(84, 24)
        ext(85, 28)
        a("v_mul_f32 v80, v7, v80")
        a("v_mul_f32 v81, v7, v81")
        a("v_mul_f32 v82, v7, v82")
        a("v_mul_f32 v83, v7, v83")
        a("v_mul_f32 v%d, s5, v80" % (48 + g))
        a("v_mul_f32 v%d, s6, v81" % (56 + g))
        a("v_mul_f32 v%d, v84, v82" % (64 + g))
        a("v_mul_f32 v%d, v84, v83" % (72 + g))
        a("v_fma_f32 v%d, -v85, v83, v%d" % (64 + g, 64 + g))
        a("v_fma_f32 v%d, v85, v82, v%d" % (72 + g, 72 + g))
    for g in range(8):
        rho, th, cr, ci = 48 + g, 56 + g, 64 + g, 72 + g
        L = [35, 32, 33, 34]
        for X in range(4):
            a("v_mul_f32 v%d, v%d, v%d" % (80 + 4 * X, th, L[X]))
            a("v_mul_f32 v%d, v%d, v%d" % (81 + 4 * X, rho, L[X]))
        for X in range(4):
            a("v_fract_f32 v%d, v%d" % (80 + 4 * X, 80 + 4 * X))
            a("v_exp_f32 v%d, v%d" % (81 + 4 * X, 81 + 4 * X))
        for X in range(4):
            a("v_cos_f32 v%d, v%d" % (82 + 4 * X, 80 + 4 * X))
            a("v_sin_f32 v%d, v%d" % (83 + 4 * X, 80 + 4 * X))
        a("v_mul_f32 v82, v81, v82")
        a("v_mul_f32 v83, v81, v83")
        for X in range(1, 4):
            a("v_mul_f32 v%d, v%d, v%d" % (82 + 4 * X, 81 + 4 * X, 82 + 4 * X))
            a("v_mul_f32 v%d, -v%d, v%d" % (83 + 4 * X, 81 + 4 * X, 83 + 4 * X))
        a("v_mul_f32 v96, v%d, v82" % cr)
        a("v_mul_f32 v97, v%d, v83" % cr)
        a("v_fma_f32 v96, -v%d, v83, v96" % ci)
        a("v_fma_f32 v97, v%d, v82, v97" % ci)
        for T in range(3):
            X = T + 1
            acc = 36 + 4 * T
            a("v_mfma_f32_16x16x4_f32 v[%d:%d], v%d, v96, v[%d:%d]" % (acc, acc + 3, 82 + 4 * X, acc, acc + 3))
        for T in range(3):
            X = T + 1
            acc = 36 + 4 * T
            a("v_mfma_f32_16x16x4_f32 v[%d:%d], v%d, v97, v[%d:%d]" % (acc, acc + 3, 83 + 4 * X, acc, acc + 3))
    a("v_mul_u32_u24 v5, 768, v2")
    a("v_lshl_add_u32 v5, v4, 6, v5")
    a("v_add_u32 v5, v5, v3")
    a("v_lshlrev_b32 v5, 2, v5")
    for T in range(3):
        for r in range(4):
            a("ds_write_b32 v5, v%d offset:%d" % (36 + 4 * T + r, (16 * T + r) * 64))
    a("s_waitcnt lgkmcnt(0)")
    a("s_barrier")
    TAB = 12288
    a("v_lshlrev_b32 v5, 2, v0")
    for k in range(3):
        for w in range(4):
            a("ds_read_b32 v%d, v5 offset:%d" % (8 + 4 * k + w, (k * 256 + w * 768) * 4))
    a("v_lshrrev_b32 v20, 4, v0")
    a("v_and_b32 v21, 15, v0")
    a("v_lshrrev_b32 v22, 3, v20")
    a("v_and_b32 v23, 7, v20")
    a("v_lshl_add_u32 v22, v22, 7, v23")
    a("v_lshl_add_u32 v22, v21, 3, v22")
    a("v_lshrrev_b32 v23, 2, v20")
    a("v_and_b32 v24, 3, v20")
    a("v_lshl_add_u32 v23, v23, 6, v24")
    a("v_lshl_add_u32 v23, v21, 2, v23")
    a("v_add_u32 v23, 0x100, v23")
    a("v_subrev_u32 v24, 8, v20")
    a("v_lshrrev_b32 v24, 1, v24")
    a("v_and_b32 v25, 1, v20")
    a("v_lshl_add_u32 v24, v24, 5, v25")
    a("v_lshl_add_u32 v24, v21, 1, v24")
    a("v_add_u32 v24, 0x180, v24")
    a("v_cmp_gt_u32 vcc, 8, v20")
    a("v_cndmask_b32 v23, v24, v23, vcc")
    a("v_add_u32 v24, 0x200, v0")
    a("s_waitcnt lgkmcnt(0)")
    for k in range(3):
        b = 8 + 4 * k
        a("v_add_f32 v%d, v%d, v%d" % (b, b, b + 1))
        a("v_add_f32 v%d, v%d, v%d" % (b + 2, b + 2, b + 3))
        a("v_add_f32 v%d, v%d, v%d" % (b, b, b + 2))
        a("v_cvt_pk_bf16_f32 v%d, v%d, v%d" % (b, b, b))
        a("v_lshlrev_b32 v%d, 1, v%d" % (22 + k, 22 + k))
        a("ds_write_b16 v%d, v%d offset:%d" % (22 + k, b, TAB))
    a("s_waitcnt lgkmcnt(0)")
    a("s_barrier")
    a("s_mul_i32 s4, s2, %d" % KR_PITCH)
    a("s_add_u32 s4, s4, %d" % KR_OFF)
    a("s_add_u32 s22, s22, s4")
    a("s_addc_u32 s23, s23, 0")
    a("s_movk_i32 s7, 0x800")
    for k in range(9):
        b = 8 + 8 * (k % 3)
        a("v_add_u32 v%d, %d, v0" % (b, 256 * k))
        a("v_cmp_le_u32 vcc, 1040, v%d" % b)
        a("v_subrev_u32 v%d, 1040, v%d" % (b + 1, b))
        a("v_cndmask_b32 v%d, v%d, v%d, vcc" % (b + 1, b, b + 1))
        a("v_cndmask_b32 v%d, 0, 1, vcc" % (b + 2))
        a("v_lshl_add_u32 v%d, v%d, 1, v%d" % (b + 1, b + 1, b + 2))
        a("v_sub_u32 v%d, s7, v%d" % (b + 1, b + 1))
        a("v_subrev_u32 v%d, 1, v%d" % (b + 2, b + 1))
        a("v_med3_i32 v%d, v%d, 0, s7" % (b + 3, b + 1))
        a("v_med3_i32 v%d, v%d, 0, s7" % (b + 4, b + 2))
        a("v_cvt_f32_u32 v%d, v%d" % (b + 5, b + 3))
        a("v_cvt_f32_u32 v%d, v%d" % (b + 6, b + 4))
        a("v_cvt_pk_bf16_f32 v%d, v%d, v%d" % (b + 5, b + 5, b + 6))
        a("v_lshrrev_b32 v%d, 16, v%d" % (b + 6, b + 5))
        a("v_and_b32 v%d, 0xffff, v%d" % (b + 5, b + 5))
        a("v_subrev_u32 v%d, 17024, v%d" % (b + 5, b + 5))
        a("v_subrev_u32 v%d, 17024, v%d" % (b + 6, b + 6))
        a("v_cmp_gt_u32 vcc, 128, v%d" % (b + 3))
        a("v_cndmask_b32 v%d, v%d, v%d, vcc" % (b + 5, b + 5, b + 3))
        a("v_cmp_gt_u32 vcc, 128, v%d" % (b + 4))
        a("v_cndmask_b32 v%d, v%d, v%d, vcc" % (b + 6, b + 6, b + 4))
        a("v_lshlrev_b32 v%d, 1, v%d" % (b + 5, b + 5))
        a("v_lshlrev_b32 v%d, 1, v%d" % (b + 6, b + 6))
        a("ds_read_u16 v%d, v%d offset:%d" % (b + 5, b + 5, TAB))
        a("ds_read_u16 v%d, v%d offset:%d" % (b + 6, b + 6, TAB))
        a("v_cmp_gt_u32 vcc, s7, v%d" % (b + 1))
        a("s_waitcnt lgkmcnt(0)")
        a("v_cndmask_b32 v%d, 0, v%d, vcc" % (b + 5, b + 5))
        a("v_cmp_gt_u32 vcc, s7, v%d" % (b + 2))
        a("v_cndmask_b32 v%d, 0, v%d, vcc" % (b + 6, b + 6))
        a("v_lshl_or_b32 v%d, v%d, 16, v%d" % (b + 5, b + 6, b + 5))
        a("v_lshlrev_b32 v%d, 2, v%d" % (b, b))
        if k == 8:
            a("v_cmp_gt_u32 vcc, 32, v0")
            a("s_and_saveexec_b64 s[24:25], vcc")
            a("s_cbranch_execz L_kgen_done")
        a("global_store_dword v%d, v%d, s[22:23]" % (b, b + 5))
    a.label("L_kgen_done")
    a("s_endpgm")


def gen_ln(a):
    a("; ---------------- LN ----------------")
    a("s_load_dwordx2 s[4:5], s[0:1], 0")
    a("s_load_dwordx2 s[6:7], s[0:1], 112")
    a("s_sub_u32 s3, s2, 512")
    a("s_lshl_b32 s3, s3, 4")
    a("v_and_b32 v1, 63, v0")
    a("v_lshrrev_b32 v2, 6, v0")
    a("v_lshlrev_b32 v3, 2, v2")
    a("v_add_u32 v3, s3, v3")
    a("v_lshlrev_b32 v3, 10, v3")
    a("v_lshl_add_u32 v3, v1, 4, v3")
    a("s_waitcnt lgkmcnt(0)")
    for rr in range(4):
        a("global_load_dwordx4 v[%d:%d], v3, s[4:5] offset:%d" % (8 + 4 * rr, 11 + 4 * rr, 1024 * rr))
    a("s_mov_b32 s8, %s" % fhex(1.0 / 512))
    a("s_mov_b32 s9, %s" % fhex(1e-5))
    for rr in range(4):
        a("s_waitcnt vmcnt(%d)" % (3 - rr))
        for k in range(4):
            a("v_lshlrev_b32 v%d, 16, v%d" % (32 + 8 * rr + 2 * k, 8 + 4 * rr + k))
            a("v_and_b32 v%d, 0xffff0000, v%d" % (33 + 8 * rr + 2 * k, 8 + 4 * rr + k))
    for rr in range(4):
        b = 32 + 8 * rr
        a("v_add_f32 v%d, v%d, v%d" % (24 + rr, b, b + 1))
    for k in range(2, 8):
        for rr in range(4):
            a("v_add_f32 v%d, v%d, v%d" % (24 + rr, 24 + rr, 32 + 8 * rr + k))

    def wave_reduce(regs):
        for sh in ("row_shr:1", "row_shr:2", "row_shr:4", "row_shr:8"):
            for r in regs:
                a("v_add_f32_dpp v%d, v%d, v%d %s row_mask:0xf bank_mask:0xf bound_ctrl:0" % (r, r, r, sh))
        for r in regs:
            a("v_add_f32_dpp v%d, v%d, v%d row_bcast:15 row_mask:0xa bank_mask:0xf" % (r, r, r))
        for r in regs:
            a("v_add_f32_dpp v%d, v%d, v%d row_bcast:31 row_mask:0xc bank_mask:0xf" % (r, r, r))
    wave_reduce([24, 25, 26, 27])
    for rr in range(4):
        a("v_mul_f32 v%d, s8, v%d" % (24 + rr, 24 + rr))
    for rr in range(4):
        a("v_readlane_b32 s%d, v%d, 63" % (10 + rr, 24 + rr))
    for rr in range(4):
        b = 32 + 8 * rr
        a("v_subrev_f32 v%d, s%d, v%d" % (64 + rr, 10 + rr, b))
    for rr in range(4):
        a("v_mul_f32 v%d, v%d, v%d" % (28 + rr, 64 + rr, 64 + rr))
    for k in range(1, 8):
        for rr in range(4):
            a("v_subrev_f32 v%d, s%d, v%d" % (64 + rr, 10 + rr, 32 + 8 * rr + k))
        for rr in range(4):
            a("v_fmac_f32 v%d, v%d, v%d" % (28 + rr, 64 + rr, 64 + rr))
    wave_reduce([28, 29, 30, 31])
    for rr in range(4):
        a("v_mul_f32 v%d, s8, v%d" % (28 + rr, 28 + rr))
    for rr in range(4):
        a("v_cvt_pk_bf16_f32 v%d, v%d, v%d" % (28 + rr, 28 + rr, 24 + rr))
    for rr in range(4):
        a("v_and_b32 v%d, 0xffff0000, v%d" % (24 + rr, 28 + rr))
        a("v_lshlrev_b32 v%d, 16, v%d" % (28 + rr, 28 + rr))
    for rr in range(4):
        a("v_add_f32 v%d, s9, v%d" % (28 + rr, 28 + rr))
    for rr in range(4):
        a("v_cvt_pk_bf16_f32 v%d, v%d, v%d" % (28 + rr, 28 + rr, 28 + rr))
    for rr in range(4):
        a("v_lshlrev_b32 v%d, 16, v%d" % (28 + rr, 28 + rr))
    for rr in range(4):
        a("v_sqrt_f32 v%d, v%d" % (28 + rr, 28 + rr))
    for rr in range(4):
        a("v_cvt_pk_bf16_f32 v%d, v%d, v%d" % (28 + rr, 28 + rr, 28 + rr))
    for rr in range(4):
        a("v_lshlrev_b32 v%d, 16, v%d" % (28 + rr, 28 + rr))
    for rr in range(4):
        a("v_rcp_f32 v%d, v%d" % (64 + rr, 28 + rr))
    for rr in range(4):
        a("v_readlane_b32 s%d, v%d, 63" % (10 + rr, 24 + rr))
        a("v_readlane_b32 s%d, v%d, 63" % (14 + rr, 28 + rr))
        a("v_readlane_b32 s%d, v%d, 63" % (18 + rr, 64 + rr))
    for rr in range(4):
        b = 32 + 8 * rr
        for k in range(4):
            x0, x1 = b + 2 * k, b + 2 * k + 1
            a("v_subrev_f32 v%d, s%d, v%d" % (x0, 10 + rr, x0))
            a("v_subrev_f32 v%d, s%d, v%d" % (x1, 10 + rr, x1))
        for k in range(4):
            x0, x1 = b + 2 * k, b + 2 * k + 1
            a("v_cvt_pk_bf16_f32 v%d, v%d, v%d" % (68 + k, x0, x1))
        for k in range(4):
            x0, x1 = b + 2 * k, b + 2 * k + 1
            a("v_lshlrev_b32 v%d, 16, v%d" % (x0, 68 + k))
            a("v_and_b32 v%d, 0xffff0000, v%d" % (x1, 68 + k))
        for k in range(8):
            a("v_mul_f32 v%d, s%d, v%d" % (72 + k, 18 + rr, b + k))
        for k in range(8):
            a("v_fma_f32 v%d, -v%d, s%d, v%d" % (b + k, 72 + k, 14 + rr, b + k))
        for k in range(8):
            a("v_fma_f32 v%d, v%d, s%d, v%d" % (72 + k, b + k, 18 + rr, 72 + k))
        for k in range(4):
            a("v_cvt_pk_bf16_f32 v%d, v%d, v%d" % (8 + 4 * rr + k, 72 + 2 * k, 73 + 2 * k))
    a("v_lshlrev_b32 v5, 2, v2")
    a("v_mul_u32_u24 v5, 1088, v5")
    a("v_lshl_add_u32 v5, v1, 4, v5")
    for rr in range(4):
        a("global_store_dwordx4 v3, v[%d:%d], s[6:7] offset:%d" % (8 + 4 * rr, 11 + 4 * rr, 1024 * rr))
        a("ds_write_b128 v5, v[%d:%d] offset:%d" % (8 + 4 * rr, 11 + 4 * rr, 1088 * rr))
    a("s_waitcnt lgkmcnt(0)")
    a("s_barrier")
    a("v_and_b32 v6, 15, v1")
    a("v_lshrrev_b32 v7, 4, v1")
    a("v_lshrrev_b32 v24, 2, v6")
    a("v_mul_u32_u24 v24, 1088, v24")
    a("v_and_b32 v25, 3, v6")
    a("v_lshlrev_b32 v25, 3, v25")
    a("v_add_u32 v24, v24, v25")
    a("v_lshlrev_b32 v25, 7, v2")
    a("v_lshl_add_u32 v25, v7, 4, v25")
    a("v_lshl_add_u32 v24, v25, 1, v24")
    for pp in range(2):
        for rb in range(4):
            r = 32 + 8 * pp + 2 * rb
            a("ds_read_b64_tr_b16 v[%d:%d], v24 offset:%d" % (r, r + 1, rb * 4 * 1088 + pp * 128))
    a("v_add_u32 v25, v25, v6")
    a("v_lshlrev_b32 v25, 12, v25")
    a("s_lshl_b32 s3, s3, 1")
    a("s_add_u32 s3, s3, %d" % XNT_OFF)
    a("v_add_u32 v25, s3, v25")
    a("v_add_u32 v26, %d, v25" % (64 * 4096))
    a("s_waitcnt lgkmcnt(4)")
    a("global_store_dwordx4 v25, v[32:35], s[6:7]")
    a("global_store_dwordx4 v25, v[36:39], s[6:7] offset:16")
    a("s_waitcnt lgkmcnt(0)")
    a("global_store_dwordx4 v26, v[40:43], s[6:7]")
    a("global_store_dwordx4 v26, v[44:47], s[6:7] offset:16")
    a("s_endpgm")


def gen_k1(a):
    a.raw(".p2align 8")
    a.raw(".type prep_kernel,@function")
    a.label("prep_kernel")
    a("s_cmp_ge_u32 s2, 640")
    a("s_cbranch_scc1 L_k1_exit")
    a("s_cmp_ge_u32 s2, 512")
    a("s_cbranch_scc1 L_k1_ln")
    gen_kgen(a)
    a.label("L_k1_ln")
    gen_ln(a)
    a.label("L_k1_exit")
    a("s_endpgm")


def gen_conv(a):
    U = 512
    KC0 = 4608
    RED = 13056
    a("; ---------------- conv ----------------")
    a("s_load_dwordx2 s[4:5], s[0:1], 64")
    a("s_load_dwordx2 s[6:7], s[0:1], 112")
    a("v_and_b32 v1, 63, v0")
    a("v_lshrrev_b32 v2, 6, v0")
    a("v_and_b32 v3, 15, v1")
    a("v_lshrrev_b32 v4, 4, v1")
    a("s_lshl_b32 s3, s28, 12")
    a("s_add_u32 s8, s3, %d" % XNT_OFF)
    a("s_mul_i32 s9, s28, %d" % KR_PITCH)
    a("s_add_u32 s9, s9, %d" % KR_OFF)
    a("v_lshlrev_b32 v5, 4, v0")
    a("v_add_u32 v6, s8, v5")
    a("v_add_u32 v7, s9, v5")
    a("s_lshl_b32 s10, s28, 1")
    a("v_mov_b32 v8, s10")
    a("s_waitcnt lgkmcnt(0)")
    a("v_add_u32 v10, 0x1000, v7")
    a("v_and_b32 v11, 7, v0")
    a("v_lshlrev_b32 v11, 4, v11")
    a("v_add_u32 v33, s9, v11")
    a("v_add_u32 v33, 0x2000, v33")
    a("global_load_dwordx4 v[12:15], v6, s[6:7]")
    a("global_load_dwordx4 v[16:19], v7, s[6:7]")
    a("global_load_dwordx4 v[20:23], v10, s[6:7]")
    a("global_load_ushort v9, v8, s[4:5]")
    a("global_load_dwordx4 v[24:27], v33, s[6:7]")
    a("v_mov_b32 v38, v11")
    for r in range(28, 32):
        a("v_mov_b32 v%d, 0" % r)
    a("v_and_b32 v10, 31, v0")
    a("v_lshlrev_b32 v10, 4, v10")
    a("ds_write_b128 v10, v[28:31]")
    a("v_lshrrev_b32 v10, 1, v4")
    a("v_and_b32 v11, 1, v4")
    a("v_sub_u32 v32, v3, v10")
    a("v_lshlrev_b32 v32, 5, v32")
    a("v_lshl_add_u32 v32, v11, 4, v32")
    a("v_lshlrev_b32 v33, 6, v2")
    a("v_sub_u32 v32, v32, v33")
    a("v_add_u32 v32, %d, v32" % (U - 256))
    a("v_and_b32 v33, 1, v3")
    a("v_lshlrev_b32 v34, 5, v2")
    a("v_lshl_add_u32 v34, v10, 4, v34")
    a("v_add_u32 v34, v34, v3")
    a("v_add_u32 v34, v34, v33")
    a("v_lshlrev_b32 v35, 3, v11")
    a("v_sub_u32 v34, v35, v34")
    a("v_add_u32 v34, %d, v34" % (2048 - 384))
    a("v_lshlrev_b32 v34, 1, v34")
    a("v_mul_u32_u24 v33, 4160, v33")
    a("v_add_u32 v34, v34, v33")
    a("v_add_u32 v34, %d, v34" % KC0)
    a("v_subrev_u32 v35, 1024, v34")
    a("v_subrev_u32 v36, 2048, v34")
    a("v_subrev_u32 v37, 3072, v34")
    a("s_waitcnt vmcnt(4)")
    a("ds_write_b128 v5, v[12:15] offset:%d" % U)
    a("s_waitcnt vmcnt(2)")
    a("ds_write_b128 v5, v[16:19] offset:%d" % KC0)
    a("ds_write_b128 v5, v[20:23] offset:%d" % (KC0 + 4096))
    a("s_waitcnt vmcnt(0)")
    a("ds_write_b128 v38, v[24:27] offset:%d" % (KC0 + 8192))
    a("s_waitcnt vmcnt(0) lgkmcnt(0)")
    a("s_barrier")
    ACC, BF, AR = 40, 72, 136
    for mi in range(16):
        a("ds_read_b128 v[%d:%d], v32 offset:%d" % (BF + 4 * mi, BF + 4 * mi + 3, 256 * mi))
    for r in range(ACC, ACC + 32):
        a("v_mov_b32 v%d, 0" % r)

    def issueA(i):
        G, ii = i >> 2, i & 3
        base = 34 + G
        r = AR + 4 * (i & 3)
        o = 64 * (3 - ii)
        a("ds_read2_b32 v[%d:%d], v%d offset0:%d offset1:%d" % (r, r + 1, base, o, o + 1))
        a("ds_read2_b32 v[%d:%d], v%d offset0:%d offset1:%d" % (r + 2, r + 3, base, o + 2, o + 3))
    for i in range(3):
        issueA(i)
    for i in range(16):
        nxt = min(15, i + 2) - i
        a("s_waitcnt lgkmcnt(%d)" % (2 * nxt))
        r = AR + 4 * (i & 3)
        first = True
        for t in range(8):
            if i <= 2 * t + 1:
                mi = 2 * t - i + 1
                a("v_mfma_f32_16x16x32_bf16 v[%d:%d], v[%d:%d], v[%d:%d], v[%d:%d]" % (
                    ACC + 4 * t, ACC + 4 * t + 3, r, r + 3, BF + 4 * mi, BF + 4 * mi + 3, ACC + 4 * t, ACC + 4 * t + 3))
                if first and i + 3 < 16:
                    issueA(i + 3)
                    first = False
    a("v_lshlrev_b32 v5, 13, v2")
    a("v_lshl_add_u32 v5, v1, 4, v5")
    for t in range(8):
        a("ds_write_b128 v5, v[%d:%d] offset:%d" % (ACC + 4 * t, ACC + 4 * t + 3, RED + 1024 * t))
    a("v_lshlrev_b32 v5, 11, v2")
    a("v_lshl_add_u32 v5, v1, 4, v5")
    a("v_lshlrev_b32 v6, 9, v2")
    a("v_lshl_add_u32 v6, v3, 4, v6")
    a("v_lshl_add_u32 v6, v4, 2, v6")
    a("v_lshlrev_b32 v6, 1, v6")
    a("s_waitcnt lgkmcnt(0)")
    a("s_barrier")
    for tt in range(2):
        for w2 in range(4):
            r = 72 + 16 * tt + 4 * w2
            a("ds_read_b128 v[%d:%d], v5 offset:%d" % (r, r + 3, RED + w2 * 8192 + tt * 1024))
        a("ds_read_b64 v[%d:%d], v6 offset:%d" % (104 + 2 * tt, 105 + 2 * tt, U + 512 * tt))
    a("v_lshlrev_b32 v9, 16, v9")
    a("s_add_u32 s3, s3, %d" % AT_OFF)
    a("v_add_u32 v6, s3, v6")
    for tt in range(2):
        a("s_waitcnt lgkmcnt(%d)" % (5 if tt == 0 else 0))
        b = 72 + 16 * tt
        for r in range(4):
            a("v_add_f32 v%d, v%d, v%d" % (b + r, b + r, b + 4 + r))
            a("v_add_f32 v%d, v%d, v%d" % (b + 8 + r, b + 8 + r, b + 12 + r))
        for r in range(4):
            a("v_add_f32 v%d, v%d, v%d" % (b + r, b + r, b + 8 + r))
        a("v_cvt_pk_bf16_f32 v%d, v%d, v%d" % (b + 4, b, b + 1))
        a("v_cvt_pk_bf16_f32 v%d, v%d, v%d" % (b + 5, b + 2, b + 3))
        x = 104 + 2 * tt
        a("v_lshlrev_b32 v%d, 16, v%d" % (b + 8, x))
        a("v_and_b32 v%d, 0xffff0000, v%d" % (b + 9, x))
        a("v_lshlrev_b32 v%d, 16, v%d" % (b + 10, x + 1))
        a("v_and_b32 v%d, 0xffff0000, v%d" % (b + 11, x + 1))
        for r in range(4):
            a("v_mul_f32 v%d, v9, v%d" % (b + 8 + r, b + 8 + r))
        a("v_cvt_pk_bf16_f32 v%d, v%d, v%d" % (b + 6, b + 8, b + 9))
        a("v_cvt_pk_bf16_f32 v%d, v%d, v%d" % (b + 7, b + 10, b + 11))
        a("v_lshlrev_b32 v%d, 16, v%d" % (b + 0, b + 4))
        a("v_and_b32 v%d, 0xffff0000, v%d" % (b + 1, b + 4))
        a("v_lshlrev_b32 v%d, 16, v%d" % (b + 2, b + 5))
        a("v_and_b32 v%d, 0xffff0000, v%d" % (b + 3, b + 5))
        a("v_lshlrev_b32 v%d, 16, v%d" % (b + 8, b + 6))
        a("v_and_b32 v%d, 0xffff0000, v%d" % (b + 9, b + 6))
        a("v_lshlrev_b32 v%d, 16, v%d" % (b + 10, b + 7))
        a("v_and_b32 v%d, 0xffff0000, v%d" % (b + 11, b + 7))
        for r in range(4):
            a("v_add_f32 v%d, v%d, v%d" % (b + r, b + r, b + 8 + r))
        a("v_cvt_pk_bf16_f32 v%d, v%d, v%d" % (b + 4, b, b + 1))
        a("v_cvt_pk_bf16_f32 v%d, v%d, v%d" % (b + 5, b + 2, b + 3))
        a("global_store_dwordx2 v6, v[%d:%d], s[6:7] offset:%d" % (b + 4, b + 5, 512 * tt))
    a("s_endpgm")


def gen_gemm1(a):
    NST = 4
    STG = 16384
    a("; ---------------- GEMM1 ----------------")
    a("s_load_dwordx2 s[4:5], s[0:1], 80")
    a("s_load_dwordx2 s[6:7], s[0:1], 112")
    a("s_and_b32 s8, s2, 7")
    a("s_lshr_b32 s9, s2, 3")
    a("s_mul_i32 s10, s8, 384")
    a("s_lshl_b32 s11, s9, 16")
    a("v_and_b32 v1, 63, v0")
    a("v_lshrrev_b32 v2, 6, v0")
    a("v_readfirstlane_b32 s12, v2")
    a("v_lshrrev_b32 v3, 2, v1")
    a("v_lshl_add_u32 v3, v2, 4, v3")
    a("v_lshrrev_b32 v4, 2, v3")
    a("v_xor_b32 v4, v4, v1")
    a("v_and_b32 v4, 3, v4")
    a("v_lshlrev_b32 v3, 10, v3")
    a("v_lshl_add_u32 v3, v4, 4, v3")
    a("v_add_u32 v3, s11, v3")
    for jj in range(3):
        a("v_mul_u32_u24 v4, 192, v2")
        a("v_add_u32 v4, %d, v4" % (64 * jj))
        a("v_add_u32 v4, v4, v1")
        a("v_mul_u32_u24 v5, 2731, v4")
        a("v_lshrrev_b32 v5, 16, v5")
        a("v_mul_u32_u24 v6, 24, v5")
        a("v_sub_u32 v6, v4, v6")
        a("v_lshlrev_b32 v7, 1, v5")
        a("v_and_b32 v7, 4, v7")
        a("v_xor_b32 v6, v6, v7")
        a("v_mul_u32_u24 v5, 2752, v5")
        a("v_lshl_add_u32 v5, v6, 4, v5")
        a("v_add_u32 v%d, s10, v5" % (8 + jj))
    a("v_and_b32 v4, 31, v1")
    a("v_lshrrev_b32 v5, 5, v1")
    a("v_and_b32 v6, 1, v2")
    a("v_lshl_add_u32 v4, v6, 5, v4")
    a("v_lshrrev_b32 v6, 2, v4")
    a("v_and_b32 v6, 3, v6")
    for s in range(2):
        a("v_add_u32 v7, %d, v5" % (2 * s))
        a("v_xor_b32 v7, v7, v6")
        a("v_lshlrev_b32 v7, 4, v7")
        a("v_lshl_add_u32 v%d, v4, 6, v7" % (11 + s))
    a("v_and_b32 v4, 15, v1")
    a("v_lshrrev_b32 v5, 4, v1")
    a("v_lshrrev_b32 v6, 1, v5")
    a("v_lshrrev_b32 v7, 2, v4")
    a("v_lshl_add_u32 v7, v6, 3, v7")
    a("v_mul_u32_u24 v7, 384, v7")
    a("v_and_b32 v6, 1, v4")
    a("v_lshl_add_u32 v7, v6, 3, v7")
    a("v_add_u32 v7, 4096, v7")
    a("v_and_b32 v5, 1, v5")
    a("v_lshlrev_b32 v5, 1, v5")
    a("v_bfe_u32 v6, v4, 1, 1")
    a("v_add_u32 v5, v5, v6")
    a("v_lshrrev_b32 v6, 1, v2")
    a("v_mul_u32_u24 v6, 12, v6")
    a("v_add_u32 v5, v5, v6")
    a("v_lshrrev_b32 v6, 1, v4")
    a("v_and_b32 v6, 4, v6")
    for ft in range(3):
        a("v_add_u32 v16, %d, v5" % (4 * ft))
        a("v_xor_b32 v16, v16, v6")
        a("v_lshl_add_u32 v%d, v16, 4, v7" % (13 + ft))
    a("s_waitcnt lgkmcnt(0)")
    a("s_mov_b32 s16, s6")
    a("s_and_b32 s17, s7, 0xffff")
    a("s_mov_b32 s18, %d" % (2 * MB))
    a("s_mov_b32 s19, 0x00020000")
    a("s_mov_b32 s20, s4")
    a("s_and_b32 s21, s5, 0xffff")
    a("s_mov_b32 s22, %d" % (512 * 2752))
    a("s_mov_b32 s23, 0x00020000")
    a("s_lshl_b32 s13, s12, 10")
    a("s_mul_i32 s14, s12, 3072")
    a("s_add_u32 s14, s14, 4096")
    ACC = 32
    for r in range(ACC, ACC + 48):
        a("v_mov_b32 v%d, 0" % r)

    def dma(c):
        st = (c % NST) * STG
        a("s_add_u32 s24, s13, %d" % st)
        a("s_mov_b32 m0, s24")
        a("s_movk_i32 s25, %d" % (64 * c))
        a("buffer_load_dwordx4 v3, s[16:19], s25 offen lds")
        a("s_mov_b32 s26, %d" % (88064 * c))
        for jj in range(3):
            a("s_add_u32 s24, s14, %d" % (st + 1024 * jj))
            a("s_mov_b32 m0, s24")
            a("buffer_load_dwordx4 v%d, s[20:23], s26 offen lds" % (8 + jj))
    NCH = 16
    for c in range(NST - 1):
        dma(c)
    FR = 80
    for c in range(NCH):
        rem = min(NCH - 1, c + NST - 2) - c
        a("s_waitcnt vmcnt(%d)" % (4 * rem))
        a("s_barrier")
        st = (c % NST) * STG
        for s in range(2):
            b = FR + 16 * s
            a("ds_read_b128 v[%d:%d], v%d offset:%d" % (b, b + 3, 11 + s, st))
            for ft in range(3):
                for jh in range(2):
                    r = b + 4 + 4 * ft + 2 * jh
                    a("ds_read_b64_tr_b16 v[%d:%d], v%d offset:%d" % (r, r + 1, 13 + ft, st + s * 6144 + jh * 1536))
        if c + NST - 1 < NCH:
            dma(c + NST - 1)
        for s in range(2):
            b = FR + 16 * s
            for ft in range(3):
                a("s_waitcnt lgkmcnt(%d)" % ((1 - s) * 7 + (2 - ft) * 2))
                acc = ACC + 16 * ft
                a("v_mfma_f32_32x32x16_bf16 v[%d:%d], v[%d:%d], v[%d:%d], v[%d:%d]" % (
                    acc, acc + 15, b + 4 + 4 * ft, b + 7 + 4 * ft, b, b + 3, acc, acc + 15))
    a("v_and_b32 v4, 31, v1")
    a("v_and_b32 v6, 1, v2")
    a("v_lshl_add_u32 v4, v6, 5, v4")
    a("s_lshl_b32 s24, s9, 6")
    a("v_add_u32 v4, s24, v4")
    a("v_mul_u32_u24 v4, 2752, v4")
    a("v_lshrrev_b32 v5, 5, v1")
    a("v_lshl_add_u32 v4, v5, 3, v4")
    a("v_lshrrev_b32 v6, 1, v2")
    a("v_mul_u32_u24 v6, 192, v6")
    a("v_add_u32 v4, v4, v6")
    a("s_add_u32 s24, s10, %d" % H_OFF)
    a("v_add_u32 v4, s24, v4")
    a("s_mul_i32 s25, s8, 6")
    a("s_lshr_b32 s26, s12, 1")
    a("s_mul_i32 s26, s26, 3")
    a("s_add_u32 s25, s25, s26")
    for ft in range(3):
        a("s_add_u32 s26, s25, %d" % ft)
        a("s_cmp_ge_u32 s26, 43")
        a("s_cbranch_scc1 L_g1_done")
        acc = ACC + 16 * ft
        for r in range(16):
            a("v_max_f32 v%d, 0, v%d" % (acc + r, acc + r))
        for rg in range(4):
            r = acc + 4 * rg
            a("v_cvt_pk_bf16_f32 v%d, v%d, v%d" % (r, r, r + 1))
            a("v_cvt_pk_bf16_f32 v%d, v%d, v%d" % (r + 1, r + 2, r + 3))
            a("global_store_dwordx2 v4, v[%d:%d], s[6:7] offset:%d" % (r, r + 1, 64 * ft + 16 * rg))
    a.label("L_g1_done")
    a("s_endpgm")


def gen_k2(a):
    a.raw(".p2align 8")
    a.raw(".type mid_kernel,@function")
    a.label("mid_kernel")
    a("s_cmp_ge_u32 s2, 768")
    a("s_cbranch_scc1 L_k2_exit")
    a("s_cmp_ge_u32 s2, 256")
    a("s_cbranch_scc1 L_k2_conv")
    gen_gemm1(a)
    a.label("L_k2_conv")
    a.flush_hazards(4)
    a("s_sub_u32 s28, s2, 256")
    gen_conv(a)
    a.label("L_k2_exit")
    a("s_endpgm")


def gen_gemm2(a):
    NST = 6
    STG = 16384
    NCH = 22
    a("; ---------------- GEMM2 ----------------")
    a("s_load_dwordx2 s[4:5], s[0:1], 88")
    a("s_load_dwordx2 s[6:7], s[0:1], 112")
    a("s_load_dwordx2 s[28:29], s[0:1], 0")
    a("s_load_dwordx2 s[30:31], s[0:1], 96")
    a("s_and_b32 s8, s2, 7")
    a("s_lshr_b32 s9, s2, 3")
    a("s_lshl_b32 s10, s8, 7")
    a("s_mul_i32 s11, s9, %d" % (64 * 2752))
    a("v_and_b32 v1, 63, v0")
    a("v_lshrrev_b32 v2, 6, v0")
    a("v_readfirstlane_b32 s12, v2")
    for jj in range(2):
        a("v_lshrrev_b32 v4, 3, v1")
        a("v_lshl_add_u32 v4, v2, 4, v4")
        a("v_add_u32 v4, %d, v4" % (8 * jj))
        a("v_and_b32 v5, 7, v1")
        a("v_lshrrev_b32 v6, 1, v4")
        a("v_and_b32 v6, 7, v6")
        a("v_xor_b32 v6, v6, v5")
        a("v_mul_u32_u24 v7, 2752, v4")
        a("v_lshl_add_u32 v7, v6, 4, v7")
        a("v_add_u32 v%d, s11, v7" % (8 + jj))
        a("v_lshlrev_b32 v6, 1, v4")
        a("v_and_b32 v6, 4, v6")
        a("v_xor_b32 v6, v6, v5")
        a("v_lshlrev_b32 v7, 10, v4")
        a("v_lshl_add_u32 v7, v6, 4, v7")
        a("v_add_u32 v%d, s10, v7" % (10 + jj))
    a("v_and_b32 v4, 31, v1")
    a("v_lshrrev_b32 v5, 5, v1")
    a("v_and_b32 v6, 1, v2")
    a("v_lshl_add_u32 v4, v6, 5, v4")
    a("v_lshrrev_b32 v6, 1, v4")
    a("v_and_b32 v6, 7, v6")
    for s in range(4):
        a("v_add_u32 v7, %d, v5" % (2 * s))
        a("v_xor_b32 v7, v7, v6")
        a("v_lshlrev_b32 v7, 4, v7")
        a("v_lshl_add_u32 v%d, v4, 7, v7" % (12 + s))
        a("v_add_u32 v%d, %d, v%d" % (16 + s, 3 * STG, 12 + s))
    a("v_and_b32 v4, 15, v1")
    a("v_lshrrev_b32 v5, 4, v1")
    a("v_lshrrev_b32 v6, 1, v5")
    a("v_lshrrev_b32 v7, 2, v4")
    a("v_lshl_add_u32 v7, v6, 3, v7")
    a("v_lshlrev_b32 v7, 7, v7")
    a("v_and_b32 v6, 1, v4")
    a("v_lshl_add_u32 v7, v6, 3, v7")
    a("v_add_u32 v7, 8192, v7")
    a("v_and_b32 v5, 1, v5")
    a("v_lshlrev_b32 v5, 1, v5")
    a("v_bfe_u32 v6, v4, 1, 1")
    a("v_add_u32 v5, v5, v6")
    a("v_lshrrev_b32 v6, 1, v2")
    a("v_lshl_add_u32 v5, v6, 2, v5")
    a("v_lshrrev_b32 v6, 1, v4")
    a("v_and_b32 v6, 4, v6")
    a("v_xor_b32 v5, v5, v6")
    a("v_lshl_add_u32 v20, v5, 4, v7")
    a("v_add_u32 v21, %d, v20" % (3 * STG))
    a("s_waitcnt lgkmcnt(0)")
    a("s_add_u32 s16, s6, %d" % H_OFF)
    a("s_addc_u32 s17, s7, 0")
    a("s_and_b32 s17, s17, 0xffff")
    a("s_mov_b32 s18, %d" % H_BYTES)
    a("s_mov_b32 s19, 0x00020000")
    a("s_mov_b32 s20, s4")
    a("s_and_b32 s21, s5, 0xffff")
    a("s_mov_b32 s22, %d" % (1376 * 1024))
    a("s_mov_b32 s23, 0x00020000")
    a("s_lshl_b32 s13, s12, 11")
    ACC = 32
    for r in range(ACC, ACC + 16):
        a("v_mov_b32 v%d, 0" % r)

    def dma(c):
        st = (c % NST) * STG
        a("s_movk_i32 s25, %d" % (128 * c))
        a("s_mov_b32 s26, %d" % (65536 * c))
        for jj in range(2):
            a("s_add_u32 s24, s13, %d" % (st + 1024 * jj))
            a("s_mov_b32 m0, s24")
            a("buffer_load_dwordx4 v%d, s[16:19], s25 offen lds" % (8 + jj))
        for jj in range(2):
            a("s_add_u32 s24, s13, %d" % (st + 8192 + 1024 * jj))
            a("s_mov_b32 m0, s24")
            a("buffer_load_dwordx4 v%d, s[20:23], s26 offen lds" % (10 + jj))
    for c in range(NST - 1):
        dma(c)
    a("v_and_b32 v4, 31, v1")
    a("v_and_b32 v6, 1, v2")
    a("v_lshl_add_u32 v4, v6, 5, v4")
    a("s_lshl_b32 s24, s9, 6")
    a("v_add_u32 v4, s24, v4")
    a("v_lshrrev_b32 v5, 5, v1")
    a("v_lshrrev_b32 v6, 1, v2")
    a("v_lshlrev_b32 v6, 5, v6")
    a("v_lshl_add_u32 v6, v5, 2, v6")
    a("s_lshl_b32 s24, s8, 6")
    a("v_add_u32 v6, s24, v6")
    a("v_lshlrev_b32 v22, 10, v4")
    a("v_lshl_add_u32 v22, v6, 1, v22")
    a("v_lshlrev_b32 v23, 12, v6")
    a("v_lshl_add_u32 v23, v4, 1, v23")
    a("v_add_u32 v23, %d, v23" % AT_OFF)
    XR = 48
    ATR = 56
    for rg in range(4):
        a("global_load_dwordx2 v[%d:%d], v22, s[28:29] offset:%d" % (XR + 2 * rg, XR + 2 * rg + 1, 16 * rg))
    for rg in range(4):
        if rg:
            a("v_add_u32 v23, %d, v23" % (8 * 4096))
        for r in range(4):
            if r < 1:
                a("global_load_ushort v%d, v23, s[6:7]" % (ATR + 4 * rg + r))
            else:
                pass
        a("v_add_u32 v24, 4096, v23")
        a("global_load_ushort v%d, v24, s[6:7]" % (ATR + 4 * rg + 1))
        a("v_add_u32 v24, 8192, v23")
        a("global_load_ushort v%d, v24, s[6:7]" % (ATR + 4 * rg + 2))
        a("v_add_u32 v24, 12288, v23")
        a("global_load_ushort v%d, v24, s[6:7]" % (ATR + 4 * rg + 3))
    NEXTRA = 20
    FR = 80
    for c in range(NCH):
        rem = min(NCH - 1, c + NST - 2) - c
        cnt = 4 * rem
        if c < NST - 1:
            cnt += NEXTRA
        cnt = min(cnt, 63)
        a("s_waitcnt vmcnt(%d)" % cnt)
        a("s_barrier")
        stn = c % NST
        hi = stn >= 3
        st = (stn - 3 if hi else stn) * STG
        for s in range(4):
            b = FR + 8 * s
            a("ds_read_b128 v[%d:%d], v%d offset:%d" % (b, b + 3, (16 if hi else 12) + s, st))
            for jh in range(2):
                r = b + 4 + 2 * jh
                a("ds_read_b64_tr_b16 v[%d:%d], v%d offset:%d" % (r, r + 1, 21 if hi else 20, st + s * 2048 + jh * 512))
        if c + NST - 1 < NCH:
            dma(c + NST - 1)
        for s in range(4):
            b = FR + 8 * s
            a("s_waitcnt lgkmcnt(%d)" % ((3 - s) * 3))
            a("v_mfma_f32_32x32x16_bf16 v[%d:%d], v[%d:%d], v[%d:%d], v[%d:%d]" % (
                ACC, ACC + 15, b + 4, b + 7, b, b + 3, ACC, ACC + 15))
    T = 112
    for rg in range(4):
        r = ACC + 4 * rg
        a("v_cvt_pk_bf16_f32 v%d, v%d, v%d" % (T, r, r + 1))
        a("v_cvt_pk_bf16_f32 v%d, v%d, v%d" % (T + 1, r + 2, r + 3))
        x = XR + 2 * rg
        a("v_lshlrev_b32 v%d, 16, v%d" % (T + 2, x))
        a("v_and_b32 v%d, 0xffff0000, v%d" % (T + 3, x))
        a("v_lshlrev_b32 v%d, 16, v%d" % (T + 4, x + 1))
        a("v_and_b32 v%d, 0xffff0000, v%d" % (T + 5, x + 1))
        for k in range(4):
            a("v_lshlrev_b32 v%d, 16, v%d" % (ATR + 4 * rg + k, ATR + 4 * rg + k))
        for k in range(4):
            a("v_add_f32 v%d, v%d, v%d" % (T + 2 + k, T + 2 + k, ATR + 4 * rg + k))
        a("v_cvt_pk_bf16_f32 v%d, v%d, v%d" % (T + 6, T + 2, T + 3))
        a("v_cvt_pk_bf16_f32 v%d, v%d, v%d" % (T + 7, T + 4, T + 5))
        a("v_lshlrev_b32 v%d, 16, v%d" % (T + 2, T + 6))
        a("v_and_b32 v%d, 0xffff0000, v%d" % (T + 3, T + 6))
        a("v_lshlrev_b32 v%d, 16, v%d" % (T + 4, T + 7))
        a("v_and_b32 v%d, 0xffff0000, v%d" % (T + 5, T + 7))
        a("v_lshlrev_b32 v%d, 16, v%d" % (T + 8, T))
        a("v_and_b32 v%d, 0xffff0000, v%d" % (T + 9, T))
        a("v_lshlrev_b32 v%d, 16, v%d" % (T + 10, T + 1))
        a("v_and_b32 v%d, 0xffff0000, v%d" % (T + 11, T + 1))
        for k in range(4):
            a("v_add_f32 v%d, v%d, v%d" % (T + 2 + k, T + 2 + k, T + 8 + k))
        o = 124 + 2 * rg
        a("v_cvt_pk_bf16_f32 v%d, v%d, v%d" % (o, T + 2, T + 3))
        a("v_cvt_pk_bf16_f32 v%d, v%d, v%d" % (o + 1, T + 4, T + 5))
        a("global_store_dwordx2 v22, v[%d:%d], s[30:31] offset:%d" % (o, o + 1, 16 * rg))
    a("s_endpgm")


def gen_k3(a):
    a.raw(".p2align 8")
    a.raw(".type fin_kernel,@function")
    a.label("fin_kernel")
    a("s_cmp_ge_u32 s2, 256")
    a("s_cbranch_scc1 L_k3_exit")
    gen_gemm2(a)
    a.label("L_k3_exit")
    a("s_endpgm")


def desc(name, vgpr, sgpr=40):
    return """.amdhsa_kernel %s
  .amdhsa_next_free_vgpr %d
  .amdhsa_next_free_sgpr %d
  .amdhsa_accum_offset %d
  .amdhsa_group_segment_fixed_size 0
  .amdhsa_kernarg_size 120
  .amdhsa_user_sgpr_count 2
  .amdhsa_user_sgpr_kernarg_segment_ptr 1
  .amdhsa_system_sgpr_workgroup_id_x 1
.end_amdhsa_kernel
""" % (name, vgpr, sgpr, (vgpr + 3) // 4 * 4)


def main():
    ref = open(os.path.join(os.path.dirname(os.path.abspath(__file__)), "..", "cdna_kernels", NAME + ".s.ref")).read()
    head = []
    for line in ref.split("\n"):
        if line.startswith("; @launch") or line.startswith("; Override") or line.startswith("; grid="):
            continue
        if line.startswith(";"):
            head.append(line)
        else:
            break
    out = "\n".join(head) + "\n"
    out += "; @launch kernel=prep_kernel grid=(640,1,1) block=(256,1,1) lds=17408\n"
    out += "; @launch kernel=mid_kernel grid=(768,1,1) block=(256,1,1) lds=65536\n"
    out += "; @launch kernel=fin_kernel grid=(256,1,1) block=(256,1,1) lds=98304\n"
    out += '.amdgcn_target "amdgcn-amd-amdhsa--gfx950"\n.text\n'
    out += ".globl prep_kernel\n.globl mid_kernel\n.globl fin_kernel\n"
    for g in (gen_k1, gen_k2, gen_k3):
        a = Asm()
        g(a)
        out += a.text()
    out += '.section .rodata,"a"\n.p2align 6\n'
    out += desc("prep_kernel", 100)
    out += ".p2align 6\n" + desc("mid_kernel", 152)
    out += ".p2align 6\n" + desc("fin_kernel", 132)
    path = os.path.join(os.path.dirname(os.path.abspath(__file__)), "..", "cdna_kernels", NAME + ".s")
    open(path, "w").write(out)
    print("wrote", path, len(out))


if __name__ == "__main__":
    main()
```

```python
import sys
import os
sys.path.insert(0, os.path.dirname(os.path.abspath(__file__)))
from asmlib import Asm

NAME = "parallel_sum__ssm_conv_s4__dense_activation_relu__prompt"
MB = 1 << 20
XN_OFF = 0
XNT_OFF = 2 * MB
KR_OFF = 4 * MB
KR_PITCH = 8320
AT_OFF = 9 * MB
H_OFF = 12 * MB
H_BYTES = 2048 * 2752

LOG2E = "0x3fb8aa3b"
INV2PI = "0x3e22f983"


def fhex(x):
    import struct
    return "0x%08x" % struct.unpack("<I", struct.pack("<f", x))[0]


def gen_kgen(a):
    a("; ---------------- K-gen ----------------")
    a("s_load_dwordx8 s[8:15], s[0:1], 8")
    a("s_load_dwordx4 s[16:19], s[0:1], 40")
    a("s_load_dwordx2 s[20:21], s[0:1], 56")
    a("s_load_dwordx2 s[22:23], s[0:1], 112")
    a("v_and_b32 v1, 63, v0")
    a("v_lshrrev_b32 v2, 6, v0")
    a("v_and_b32 v3, 15, v1")
    a("v_lshrrev_b32 v4, 4, v1")
    a("s_lshl_b32 s3, s2, 8")
    a("v_lshlrev_b32 v5, 6, v2")
    a("v_lshl_add_u32 v5, v4, 4, v5")
    a("v_add_u32 v5, s3, v5")
    a("s_lshl_b32 s4, s2, 1")
    a("v_mov_b32 v6, s4")
    a("s_waitcnt lgkmcnt(0)")
    a("global_load_dwordx4 v[8:11], v5, s[8:9]")
    a("global_load_dwordx4 v[12:15], v5, s[10:11]")
    a("global_load_dwordx4 v[16:19], v5, s[12:13]")
    a("global_load_dwordx4 v[20:23], v5, s[14:15]")
    a("global_load_dwordx4 v[24:27], v5, s[16:17]")
    a("global_load_dwordx4 v[28:31], v5, s[18:19]")
    a("global_load_ushort v7, v6, s[20:21]")
    a("v_lshrrev_b32 v32, 3, v3")
    a("v_and_b32 v33, 7, v3")
    a("v_lshl_add_u32 v32, v32, 7, v33")
    a("v_cvt_f32_u32 v32, v32")
    a("v_lshrrev_b32 v33, 2, v3")
    a("v_and_b32 v34, 3, v3")
    a("v_lshlrev_b32 v34, 1, v34")
    a("v_lshl_add_u32 v33, v33, 7, v34")
    a("v_add_u32 v33, 0x100, v33")
    a("v_subrev_u32 v34, 8, v3")
    a("v_lshrrev_b32 v34, 1, v34")
    a("v_and_b32 v35, 1, v3")
    a("v_lshlrev_b32 v35, 2, v35")
    a("v_lshl_add_u32 v34, v34, 7, v35")
    a("v_add_u32 v34, 0x200, v34")
    a("v_cmp_gt_u32 vcc, 8, v3")
    a("v_cndmask_b32 v33, v34, v33, vcc")
    a("v_cvt_f32_u32 v33, v33")
    a("v_lshlrev_b32 v34, 7, v3")
    a("v_add_u32 v34, 0x400, v34")
    a("v_cvt_f32_u32 v34, v34")
    a("v_lshlrev_b32 v35, 3, v3")
    a("v_cvt_f32_u32 v35, v35")
    for r in range(36, 48):
        a("v_mov_b32 v%d, 0" % r)
    a("s_mov_b32 s5, %s" % LOG2E)
    a("s_mov_b32 s6, %s" % INV2PI)
    a("s_waitcnt vmcnt(0)")
    a("v_lshlrev_b32 v7, 16, v7")
    a("v_mul_f32 v7, s5, v7")
    a("v_exp_f32 v7, v7")
    a("v_cvt_pk_bf16_f32 v7, v7, v7")
    a("v_lshlrev_b32 v7, 16, v7")
    for g in range(8):
        def ext(dst, base):
            r = base + (g >> 1)
            if g & 1:
                a("v_and_b32 v%d, 0xffff0000, v%d" % (dst, r))
            else:
                a("v_lshlrev_b32 v%d, 16, v%d" % (dst, r))
        ext(80, 8)
        ext(81, 12)
        ext(82, 16)
        ext(83, 20)
        ext(84, 24)
        ext(85, 28)
        a("v_mul_f32 v80, v7, v80")
        a("v_mul_f32 v81, v7, v81")
        a("v_mul_f32 v82, v7, v82")
        a("v_mul_f32 v83, v7, v83")
        a("v_mul_f32 v%d, s5, v80" % (48 + g))
        a("v_mul_f32 v%d, s6, v81" % (56 + g))
        a("v_mul_f32 v%d, v84, v82" % (64 + g))
        a("v_mul_f32 v%d, v84, v83" % (72 + g))
        a("v_fma_f32 v%d, -v85, v83, v%d" % (64 + g, 64 + g))
        a("v_fma_f32 v%d, v85, v82, v%d" % (72 + g, 72 + g))
    for g in range(8):
        rho, th, cr, ci = 48 + g, 56 + g, 64 + g, 72 + g
        L = [35, 32, 33, 34]
        for X in range(4):
            a("v_mul_f32 v%d, v%d, v%d" % (80 + 4 * X, th, L[X]))
            a("v_mul_f32 v%d, v%d, v%d" % (81 + 4 * X, rho, L[X]))
        for X in range(4):
            a("v_fract_f32 v%d, v%d" % (80 + 4 * X, 80 + 4 * X))
            a("v_exp_f32 v%d, v%d" % (81 + 4 * X, 81 + 4 * X))
        for X in range(4):
            a("v_cos_f32 v%d, v%d" % (82 + 4 * X, 80 + 4 * X))
            a("v_sin_f32 v%d, v%d" % (83 + 4 * X, 80 + 4 * X))
        a("v_mul_f32 v82, v81, v82")
        a("v_mul_f32 v83, v81, v83")
        for X in range(1, 4):
            a("v_mul_f32 v%d, v%d, v%d" % (82 + 4 * X, 81 + 4 * X, 82 + 4 * X))
            a("v_mul_f32 v%d, -v%d, v%d" % (83 + 4 * X, 81 + 4 * X, 83 + 4 * X))
        a("v_mul_f32 v96, v%d, v82" % cr)
        a("v_mul_f32 v97, v%d, v83" % cr)
        a("v_fma_f32 v96, -v%d, v83, v96" % ci)
        a("v_fma_f32 v97, v%d, v82, v97" % ci)
        for T in range(3):
            X = T + 1
            acc = 36 + 4 * T
            a("v_mfma_f32_16x16x4_f32 v[%d:%d], v%d, v96, v[%d:%d]" % (acc, acc + 3, 82 + 4 * X, acc, acc + 3))
        for T in range(3):
            X = T + 1
            acc = 36 + 4 * T
            a("v_mfma_f32_16x16x4_f32 v[%d:%d], v%d, v97, v[%d:%d]" % (acc, acc + 3, 83 + 4 * X, acc, acc + 3))
    a("v_mul_u32_u24 v5, 768, v2")
    a("v_lshl_add_u32 v5, v4, 6, v5")
    a("v_add_u32 v5, v5, v3")
    a("v_lshlrev_b32 v5, 2, v5")
    for T in range(3):
        for r in range(4):
            a("ds_write_b32 v5, v%d offset:%d" % (36 + 4 * T + r, (16 * T + r) * 64))
    a("s_waitcnt lgkmcnt(0)")
    a("s_barrier")
    TAB = 12288
    a("v_lshlrev_b32 v5, 2, v0")
    for k in range(3):
        for w in range(4):
            a("ds_read_b32 v%d, v5 offset:%d" % (8 + 4 * k + w, (k * 256 + w * 768) * 4))
    a("v_lshrrev_b32 v20, 4, v0")
    a("v_and_b32 v21, 15, v0")
    a("v_lshrrev_b32 v22, 3, v20")
    a("v_and_b32 v23, 7, v20")
    a("v_lshl_add_u32 v22, v22, 7, v23")
    a("v_lshl_add_u32 v22, v21, 3, v22")
    a("v_lshrrev_b32 v23, 2, v20")
    a("v_and_b32 v24, 3, v20")
    a("v_lshl_add_u32 v23, v23, 6, v24")
    a("v_lshl_add_u32 v23, v21, 2, v23")
    a("v_add_u32 v23, 0x100, v23")
    a("v_subrev_u32 v24, 8, v20")
    a("v_lshrrev_b32 v24, 1, v24")
    a("v_and_b32 v25, 1, v20")
    a("v_lshl_add_u32 v24, v24, 5, v25")
    a("v_lshl_add_u32 v24, v21, 1, v24")
    a("v_add_u32 v24, 0x180, v24")
    a("v_cmp_gt_u32 vcc, 8, v20")
    a("v_cndmask_b32 v23, v24, v23, vcc")
    a("v_add_u32 v24, 0x200, v0")
    a("s_waitcnt lgkmcnt(0)")
    for k in range(3):
        b = 8 + 4 * k
        a("v_add_f32 v%d, v%d, v%d" % (b, b, b + 1))
        a("v_add_f32 v%d, v%d, v%d" % (b + 2, b + 2, b + 3))
        a("v_add_f32 v%d, v%d, v%d" % (b, b, b + 2))
        a("v_cvt_pk_bf16_f32 v%d, v%d, v%d" % (b, b, b))
        a("v_lshlrev_b32 v%d, 1, v%d" % (22 + k, 22 + k))
        a("ds_write_b16 v%d, v%d offset:%d" % (22 + k, b, TAB))
    a("s_waitcnt lgkmcnt(0)")
    a("s_barrier")
    a("s_mul_i32 s4, s2, %d" % KR_PITCH)
    a("s_add_u32 s4, s4, %d" % KR_OFF)
    a("s_add_u32 s22, s22, s4")
    a("s_addc_u32 s23, s23, 0")
    a("s_movk_i32 s7, 0x800")
    for k in range(9):
        b = 8 + 8 * (k % 3)
        a("v_add_u32 v%d, %d, v0" % (b, 256 * k))
        a("v_cmp_le_u32 vcc, 1040, v%d" % b)
        a("v_subrev_u32 v%d, 1040, v%d" % (b + 1, b))
        a("v_cndmask_b32 v%d, v%d, v%d, vcc" % (b + 1, b, b + 1))
        a("v_cndmask_b32 v%d, 0, 1, vcc" % (b + 2))
        a("v_lshl_add_u32 v%d, v%d, 1, v%d" % (b + 1, b + 1, b + 2))
        a("v_sub_u32 v%d, s7, v%d" % (b + 1, b + 1))
        a("v_subrev_u32 v%d, 1, v%d" % (b + 2, b + 1))
        a("v_med3_i32 v%d, v%d, 0, s7" % (b + 3, b + 1))
        a("v_med3_i32 v%d, v%d, 0, s7" % (b + 4, b + 2))
        a("v_cvt_f32_u32 v%d, v%d" % (b + 5, b + 3))
        a("v_cvt_f32_u32 v%d, v%d" % (b + 6, b + 4))
        a("v_cvt_pk_bf16_f32 v%d, v%d, v%d" % (b + 5, b + 5, b + 6))
        a("v_lshrrev_b32 v%d, 16, v%d" % (b + 6, b + 5))
        a("v_and_b32 v%d, 0xffff, v%d" % (b + 5, b + 5))
        a("v_subrev_u32 v%d, 17024, v%d" % (b + 5, b + 5))
        a("v_subrev_u32 v%d, 17024, v%d" % (b + 6, b + 6))
        a("v_cmp_gt_u32 vcc, 128, v%d" % (b + 3))
        a("v_cndmask_b32 v%d, v%d, v%d, vcc" % (b + 5, b + 5, b + 3))
        a("v_cmp_gt_u32 vcc, 128, v%d" % (b + 4))
        a("v_cndmask_b32 v%d, v%d, v%d, vcc" % (b + 6, b + 6, b + 4))
        a("v_lshlrev_b32 v%d, 1, v%d" % (b + 5, b + 5))
        a("v_lshlrev_b32 v%d, 1, v%d" % (b + 6, b + 6))
        a("ds_read_u16 v%d, v%d offset:%d" % (b + 5, b + 5, TAB))
        a("ds_read_u16 v%d, v%d offset:%d" % (b + 6, b + 6, TAB))
        a("v_cmp_gt_u32 vcc, s7, v%d" % (b + 1))
        a("s_waitcnt lgkmcnt(0)")
        a("v_cndmask_b32 v%d, 0, v%d, vcc" % (b + 5, b + 5))
        a("v_cmp_gt_u32 vcc, s7, v%d" % (b + 2))
        a("v_cndmask_b32 v%d, 0, v%d, vcc" % (b + 6, b + 6))
        a("v_lshl_or_b32 v%d, v%d, 16, v%d" % (b + 5, b + 6, b + 5))
        a("v_lshlrev_b32 v%d, 2, v%d" % (b, b))
        if k == 8:
            a("v_cmp_gt_u32 vcc, 32, v0")
            a("s_and_saveexec_b64 s[24:25], vcc")
            a("s_cbranch_execz L_kgen_done")
        a("global_store_dword v%d, v%d, s[22:23]" % (b, b + 5))
    a.label("L_kgen_done")
    a("s_endpgm")


def gen_ln(a):
    a("; ---------------- LN ----------------")
    a("s_load_dwordx2 s[4:5], s[0:1], 0")
    a("s_load_dwordx2 s[6:7], s[0:1], 112")
    a("s_sub_u32 s3, s2, 512")
    a("s_and_b32 s8, s3, 7")
    a("s_lshr_b32 s3, s3, 3")
    a("s_lshl_b32 s8, s8, 8")
    a("s_lshl_b32 s3, s3, 4")
    a("s_add_u32 s3, s3, s8")
    a("v_and_b32 v1, 63, v0")
    a("v_lshrrev_b32 v2, 6, v0")
    a("v_lshlrev_b32 v3, 2, v2")
    a("v_add_u32 v3, s3, v3")
    a("v_lshlrev_b32 v3, 10, v3")
    a("v_lshl_add_u32 v3, v1, 4, v3")
    a("s_waitcnt lgkmcnt(0)")
    for rr in range(4):
        a("global_load_dwordx4 v[%d:%d], v3, s[4:5] offset:%d" % (8 + 4 * rr, 11 + 4 * rr, 1024 * rr))
    a("s_mov_b32 s8, %s" % fhex(1.0 / 512))
    a("s_mov_b32 s9, %s" % fhex(1e-5))
    for rr in range(4):
        a("s_waitcnt vmcnt(%d)" % (3 - rr))
        for k in range(4):
            a("v_lshlrev_b32 v%d, 16, v%d" % (32 + 8 * rr + 2 * k, 8 + 4 * rr + k))
            a("v_and_b32 v%d, 0xffff0000, v%d" % (33 + 8 * rr + 2 * k, 8 + 4 * rr + k))
    for rr in range(4):
        b = 32 + 8 * rr
        a("v_add_f32 v%d, v%d, v%d" % (24 + rr, b, b + 1))
    for k in range(2, 8):
        for rr in range(4):
            a("v_add_f32 v%d, v%d, v%d" % (24 + rr, 24 + rr, 32 + 8 * rr + k))

    def wave_reduce(regs):
        for sh in ("row_shr:1", "row_shr:2", "row_shr:4", "row_shr:8"):
            for r in regs:
                a("v_add_f32_dpp v%d, v%d, v%d %s row_mask:0xf bank_mask:0xf bound_ctrl:0" % (r, r, r, sh))
        for r in regs:
            a("v_add_f32_dpp v%d, v%d, v%d row_bcast:15 row_mask:0xa bank_mask:0xf" % (r, r, r))
        for r in regs:
            a("v_add_f32_dpp v%d, v%d, v%d row_bcast:31 row_mask:0xc bank_mask:0xf" % (r, r, r))
    wave_reduce([24, 25, 26, 27])
    for rr in range(4):
        a("v_mul_f32 v%d, s8, v%d" % (24 + rr, 24 + rr))
    for rr in range(4):
        a("v_readlane_b32 s%d, v%d, 63" % (10 + rr, 24 + rr))
    for rr in range(4):
        b = 32 + 8 * rr
        a("v_subrev_f32 v%d, s%d, v%d" % (64 + rr, 10 + rr, b))
    for rr in range(4):
        a("v_mul_f32 v%d, v%d, v%d" % (28 + rr, 64 + rr, 64 + rr))
    for k in range(1, 8):
        for rr in range(4):
            a("v_subrev_f32 v%d, s%d, v%d" % (64 + rr, 10 + rr, 32 + 8 * rr + k))
        for rr in range(4):
            a("v_fmac_f32 v%d, v%d, v%d" % (28 + rr, 64 + rr, 64 + rr))
    wave_reduce([28, 29, 30, 31])
    for rr in range(4):
        a("v_mul_f32 v%d, s8, v%d" % (28 + rr, 28 + rr))
    for rr in range(4):
        a("v_cvt_pk_bf16_f32 v%d, v%d, v%d" % (28 + rr, 28 + rr, 24 + rr))
    for rr in range(4):
        a("v_and_b32 v%d, 0xffff0000, v%d" % (24 + rr, 28 + rr))
        a("v_lshlrev_b32 v%d, 16, v%d" % (28 + rr, 28 + rr))
    for rr in range(4):
        a("v_add_f32 v%d, s9, v%d" % (28 + rr, 28 + rr))
    for rr in range(4):
        a("v_cvt_pk_bf16_f32 v%d, v%d, v%d" % (28 + rr, 28 + rr, 28 + rr))
    for rr in range(4):
        a("v_lshlrev_b32 v%d, 16, v%d" % (28 + rr, 28 + rr))
    for rr in range(4):
        a("v_sqrt_f32 v%d, v%d" % (28 + rr, 28 + rr))
    for rr in range(4):
        a("v_cvt_pk_bf16_f32 v%d, v%d, v%d" % (28 + rr, 28 + rr, 28 + rr))
    for rr in range(4):
        a("v_lshlrev_b32 v%d, 16, v%d" % (28 + rr, 28 + rr))
    for rr in range(4):
        a("v_rcp_f32 v%d, v%d" % (64 + rr, 28 + rr))
    for rr in range(4):
        a("v_readlane_b32 s%d, v%d, 63" % (10 + rr, 24 + rr))
        a("v_readlane_b32 s%d, v%d, 63" % (14 + rr, 28 + rr))
        a("v_readlane_b32 s%d, v%d, 63" % (18 + rr, 64 + rr))
    for rr in range(4):
        b = 32 + 8 * rr
        for k in range(4):
            x0, x1 = b + 2 * k, b + 2 * k + 1
            a("v_subrev_f32 v%d, s%d, v%d" % (x0, 10 + rr, x0))
            a("v_subrev_f32 v%d, s%d, v%d" % (x1, 10 + rr, x1))
        for k in range(4):
            x0, x1 = b + 2 * k, b + 2 * k + 1
            a("v_cvt_pk_bf16_f32 v%d, v%d, v%d" % (68 + k, x0, x1))
        for k in range(4):
            x0, x1 = b + 2 * k, b + 2 * k + 1
            a("v_lshlrev_b32 v%d, 16, v%d" % (x0, 68 + k))
            a("v_and_b32 v%d, 0xffff0000, v%d" % (x1, 68 + k))
        for k in range(8):
            a("v_mul_f32 v%d, s%d, v%d" % (72 + k, 18 + rr, b + k))
        for k in range(8):
            a("v_fma_f32 v%d, -v%d, s%d, v%d" % (b + k, 72 + k, 14 + rr, b + k))
        for k in range(8):
            a("v_fma_f32 v%d, v%d, s%d, v%d" % (72 + k, b + k, 18 + rr, 72 + k))
        for k in range(4):
            a("v_cvt_pk_bf16_f32 v%d, v%d, v%d" % (8 + 4 * rr + k, 72 + 2 * k, 73 + 2 * k))
    a("v_lshlrev_b32 v5, 2, v2")
    a("v_mul_u32_u24 v5, 1088, v5")
    a("v_lshl_add_u32 v5, v1, 4, v5")
    for rr in range(4):
        a("global_store_dwordx4 v3, v[%d:%d], s[6:7] offset:%d" % (8 + 4 * rr, 11 + 4 * rr, 1024 * rr))
        a("ds_write_b128 v5, v[%d:%d] offset:%d" % (8 + 4 * rr, 11 + 4 * rr, 1088 * rr))
    a("s_waitcnt lgkmcnt(0)")
    a("s_barrier")
    a("v_and_b32 v6, 15, v1")
    a("v_lshrrev_b32 v7, 4, v1")
    a("v_lshrrev_b32 v24, 2, v6")
    a("v_mul_u32_u24 v24, 1088, v24")
    a("v_and_b32 v25, 3, v6")
    a("v_lshlrev_b32 v25, 3, v25")
    a("v_add_u32 v24, v24, v25")
    a("v_lshlrev_b32 v25, 7, v2")
    a("v_lshl_add_u32 v25, v7, 4, v25")
    a("v_lshl_add_u32 v24, v25, 1, v24")
    for pp in range(2):
        for rb in range(4):
            r = 32 + 8 * pp + 2 * rb
            a("ds_read_b64_tr_b16 v[%d:%d], v24 offset:%d" % (r, r + 1, rb * 4 * 1088 + pp * 128))
    a("v_add_u32 v25, v25, v6")
    a("v_lshlrev_b32 v25, 12, v25")
    a("s_lshl_b32 s3, s3, 1")
    a("s_add_u32 s3, s3, %d" % XNT_OFF)
    a("v_add_u32 v25, s3, v25")
    a("v_add_u32 v26, %d, v25" % (64 * 4096))
    a("s_waitcnt lgkmcnt(4)")
    a("global_store_dwordx4 v25, v[32:35], s[6:7]")
    a("global_store_dwordx4 v25, v[36:39], s[6:7] offset:16")
    a("s_waitcnt lgkmcnt(0)")
    a("global_store_dwordx4 v26, v[40:43], s[6:7]")
    a("global_store_dwordx4 v26, v[44:47], s[6:7] offset:16")
    a("s_endpgm")


def gen_k1(a):
    a.raw(".p2align 8")
    a.raw(".type prep_kernel,@function")
    a.label("prep_kernel")
    a("s_cmp_ge_u32 s2, 640")
    a("s_cbranch_scc1 L_k1_exit")
    a("s_cmp_ge_u32 s2, 512")
    a("s_cbranch_scc1 L_k1_ln")
    gen_kgen(a)
    a.label("L_k1_ln")
    gen_ln(a)
    a.label("L_k1_exit")
    a("s_endpgm")


def gen_conv(a):
    U = 512
    KC0 = 4608
    RED = 13056
    a("; ---------------- conv ----------------")
    a("s_load_dwordx2 s[4:5], s[0:1], 64")
    a("s_load_dwordx2 s[6:7], s[0:1], 112")
    a("v_and_b32 v1, 63, v0")
    a("v_lshrrev_b32 v2, 6, v0")
    a("v_and_b32 v3, 15, v1")
    a("v_lshrrev_b32 v4, 4, v1")
    a("s_lshl_b32 s3, s28, 12")
    a("s_add_u32 s8, s3, %d" % XNT_OFF)
    a("s_mul_i32 s9, s28, %d" % KR_PITCH)
    a("s_add_u32 s9, s9, %d" % KR_OFF)
    a("v_lshlrev_b32 v5, 4, v0")
    a("v_add_u32 v6, s8, v5")
    a("v_add_u32 v7, s9, v5")
    a("s_lshl_b32 s10, s28, 1")
    a("v_mov_b32 v8, s10")
    a("s_waitcnt lgkmcnt(0)")
    a("v_add_u32 v10, 0x1000, v7")
    a("v_and_b32 v11, 7, v0")
    a("v_lshlrev_b32 v11, 4, v11")
    a("v_add_u32 v33, s9, v11")
    a("v_add_u32 v33, 0x2000, v33")
    a("global_load_dwordx4 v[12:15], v6, s[6:7]")
    a("global_load_dwordx4 v[16:19], v7, s[6:7]")
    a("global_load_dwordx4 v[20:23], v10, s[6:7]")
    a("global_load_ushort v9, v8, s[4:5]")
    a("global_load_dwordx4 v[24:27], v33, s[6:7]")
    a("v_mov_b32 v38, v11")
    for r in range(28, 32):
        a("v_mov_b32 v%d, 0" % r)
    a("v_and_b32 v10, 31, v0")
    a("v_lshlrev_b32 v10, 4, v10")
    a("ds_write_b128 v10, v[28:31]")
    a("v_lshrrev_b32 v10, 1, v4")
    a("v_and_b32 v11, 1, v4")
    a("v_sub_u32 v32, v3, v10")
    a("v_lshlrev_b32 v32, 5, v32")
    a("v_lshl_add_u32 v32, v11, 4, v32")
    a("v_lshlrev_b32 v33, 6, v2")
    a("v_sub_u32 v32, v32, v33")
    a("v_add_u32 v32, %d, v32" % (U - 256))
    a("v_and_b32 v33, 1, v3")
    a("v_lshlrev_b32 v34, 5, v2")
    a("v_lshl_add_u32 v34, v10, 4, v34")
    a("v_add_u32 v34, v34, v3")
    a("v_add_u32 v34, v34, v33")
    a("v_lshlrev_b32 v35, 3, v11")
    a("v_sub_u32 v34, v35, v34")
    a("v_add_u32 v34, %d, v34" % (2048 - 384))
    a("v_lshlrev_b32 v34, 1, v34")
    a("v_mul_u32_u24 v33, 4160, v33")
    a("v_add_u32 v34, v34, v33")
    a("v_add_u32 v34, %d, v34" % KC0)
    a("v_subrev_u32 v35, 1024, v34")
    a("v_subrev_u32 v36, 2048, v34")
    a("v_subrev_u32 v37, 3072, v34")
    a("s_waitcnt vmcnt(4)")
    a("ds_write_b128 v5, v[12:15] offset:%d" % U)
    a("s_waitcnt vmcnt(2)")
    a("ds_write_b128 v5, v[16:19] offset:%d" % KC0)
    a("ds_write_b128 v5, v[20:23] offset:%d" % (KC0 + 4096))
    a("s_waitcnt vmcnt(0)")
    a("ds_write_b128 v38, v[24:27] offset:%d" % (KC0 + 8192))
    a("s_waitcnt vmcnt(0) lgkmcnt(0)")
    a("s_barrier")
    ACC, BF, AR = 40, 72, 136
    for mi in range(16):
        a("ds_read_b128 v[%d:%d], v32 offset:%d" % (BF + 4 * mi, BF + 4 * mi + 3, 256 * mi))
    for r in range(ACC, ACC + 32):
        a("v_mov_b32 v%d, 0" % r)

    def issueA(i):
        G, ii = i >> 2, i & 3
        base = 34 + G
        r = AR + 4 * (i & 3)
        o = 64 * (3 - ii)
        a("ds_read2_b32 v[%d:%d], v%d offset0:%d offset1:%d" % (r, r + 1, base, o, o + 1))
        a("ds_read2_b32 v[%d:%d], v%d offset0:%d offset1:%d" % (r + 2, r + 3, base, o + 2, o + 3))
    for i in range(3):
        issueA(i)
    for i in range(16):
        nxt = min(15, i + 2) - i
        a("s_waitcnt lgkmcnt(%d)" % (2 * nxt))
        r = AR + 4 * (i & 3)
        first = True
        for t in range(8):
            if i <= 2 * t + 1:
                mi = 2 * t - i + 1
                a("v_mfma_f32_16x16x32_bf16 v[%d:%d], v[%d:%d], v[%d:%d], v[%d:%d]" % (
                    ACC + 4 * t, ACC + 4 * t + 3, r, r + 3, BF + 4 * mi, BF + 4 * mi + 3, ACC + 4 * t, ACC + 4 * t + 3))
                if first and i + 3 < 16:
                    issueA(i + 3)
                    first = False
    a("v_lshlrev_b32 v5, 13, v2")
    a("v_lshl_add_u32 v5, v1, 4, v5")
    for t in range(8):
        a("ds_write_b128 v5, v[%d:%d] offset:%d" % (ACC + 4 * t, ACC + 4 * t + 3, RED + 1024 * t))
    a("v_lshlrev_b32 v5, 11, v2")
    a("v_lshl_add_u32 v5, v1, 4, v5")
    a("v_lshlrev_b32 v6, 9, v2")
    a("v_lshl_add_u32 v6, v3, 4, v6")
    a("v_lshl_add_u32 v6, v4, 2, v6")
    a("v_lshlrev_b32 v6, 1, v6")
    a("s_waitcnt lgkmcnt(0)")
    a("s_barrier")
    for tt in range(2):
        for w2 in range(4):
            r = 72 + 16 * tt + 4 * w2
            a("ds_read_b128 v[%d:%d], v5 offset:%d" % (r, r + 3, RED + w2 * 8192 + tt * 1024))
        a("ds_read_b64 v[%d:%d], v6 offset:%d" % (104 + 2 * tt, 105 + 2 * tt, U + 512 * tt))
    a("v_lshlrev_b32 v9, 16, v9")
    a("s_add_u32 s3, s3, %d" % AT_OFF)
    a("v_add_u32 v6, s3, v6")
    for tt in range(2):
        a("s_waitcnt lgkmcnt(%d)" % (5 if tt == 0 else 0))
        b = 72 + 16 * tt
        for r in range(4):
            a("v_add_f32 v%d, v%d, v%d" % (b + r, b + r, b + 4 + r))
            a("v_add_f32 v%d, v%d, v%d" % (b + 8 + r, b + 8 + r, b + 12 + r))
        for r in range(4):
            a("v_add_f32 v%d, v%d, v%d" % (b + r, b + r, b + 8 + r))
        a("v_cvt_pk_bf16_f32 v%d, v%d, v%d" % (b + 4, b, b + 1))
        a("v_cvt_pk_bf16_f32 v%d, v%d, v%d" % (b + 5, b + 2, b + 3))
        x = 104 + 2 * tt
        a("v_lshlrev_b32 v%d, 16, v%d" % (b + 8, x))
        a("v_and_b32 v%d, 0xffff0000, v%d" % (b + 9, x))
        a("v_lshlrev_b32 v%d, 16, v%d" % (b + 10, x + 1))
        a("v_and_b32 v%d, 0xffff0000, v%d" % (b + 11, x + 1))
        for r in range(4):
            a("v_mul_f32 v%d, v9, v%d" % (b + 8 + r, b + 8 + r))
        a("v_cvt_pk_bf16_f32 v%d, v%d, v%d" % (b + 6, b + 8, b + 9))
        a("v_cvt_pk_bf16_f32 v%d, v%d, v%d" % (b + 7, b + 10, b + 11))
        a("v_lshlrev_b32 v%d, 16, v%d" % (b + 0, b + 4))
        a("v_and_b32 v%d, 0xffff0000, v%d" % (b + 1, b + 4))
        a("v_lshlrev_b32 v%d, 16, v%d" % (b + 2, b + 5))
        a("v_and_b32 v%d, 0xffff0000, v%d" % (b + 3, b + 5))
        a("v_lshlrev_b32 v%d, 16, v%d" % (b + 8, b + 6))
        a("v_and_b32 v%d, 0xffff0000, v%d" % (b + 9, b + 6))
        a("v_lshlrev_b32 v%d, 16, v%d" % (b + 10, b + 7))
        a("v_and_b32 v%d, 0xffff0000, v%d" % (b + 11, b + 7))
        for r in range(4):
            a("v_add_f32 v%d, v%d, v%d" % (b + r, b + r, b + 8 + r))
        a("v_cvt_pk_bf16_f32 v%d, v%d, v%d" % (b + 4, b, b + 1))
        a("v_cvt_pk_bf16_f32 v%d, v%d, v%d" % (b + 5, b + 2, b + 3))
        a("global_store_dwordx2 v6, v[%d:%d], s[6:7] offset:%d" % (b + 4, b + 5, 512 * tt))
    a("s_endpgm")


def gen_gemm1(a):
    NST = 4
    STG = 16384
    a("; ---------------- GEMM1 ----------------")
    a("s_load_dwordx2 s[4:5], s[0:1], 80")
    a("s_load_dwordx2 s[6:7], s[0:1], 112")
    a("s_and_b32 s9, s2, 7")
    a("s_lshr_b32 s8, s2, 5")
    a("s_bfe_u32 s10, s2, 0x20003")
    a("s_lshl_b32 s9, s9, 2")
    a("s_add_u32 s9, s9, s10")
    a("s_mul_i32 s10, s8, 384")
    a("s_lshl_b32 s11, s9, 16")
    a("v_and_b32 v1, 63, v0")
    a("v_lshrrev_b32 v2, 6, v0")
    a("v_readfirstlane_b32 s12, v2")
    a("v_lshrrev_b32 v3, 2, v1")
    a("v_lshl_add_u32 v3, v2, 4, v3")
    a("v_lshrrev_b32 v4, 2, v3")
    a("v_xor_b32 v4, v4, v1")
    a("v_and_b32 v4, 3, v4")
    a("v_lshlrev_b32 v3, 10, v3")
    a("v_lshl_add_u32 v3, v4, 4, v3")
    a("v_add_u32 v3, s11, v3")
    for jj in range(3):
        a("v_mul_u32_u24 v4, 192, v2")
        a("v_add_u32 v4, %d, v4" % (64 * jj))
        a("v_add_u32 v4, v4, v1")
        a("v_mul_u32_u24 v5, 2731, v4")
        a("v_lshrrev_b32 v5, 16, v5")
        a("v_mul_u32_u24 v6, 24, v5")
        a("v_sub_u32 v6, v4, v6")
        a("v_lshlrev_b32 v7, 1, v5")
        a("v_and_b32 v7, 4, v7")
        a("v_xor_b32 v6, v6, v7")
        a("v_mul_u32_u24 v5, 2752, v5")
        a("v_lshl_add_u32 v5, v6, 4, v5")
        a("v_add_u32 v%d, s10, v5" % (8 + jj))
    a("v_and_b32 v4, 31, v1")
    a("v_lshrrev_b32 v5, 5, v1")
    a("v_and_b32 v6, 1, v2")
    a("v_lshl_add_u32 v4, v6, 5, v4")
    a("v_lshrrev_b32 v6, 2, v4")
    a("v_and_b32 v6, 3, v6")
    for s in range(2):
        a("v_add_u32 v7, %d, v5" % (2 * s))
        a("v_xor_b32 v7, v7, v6")
        a("v_lshlrev_b32 v7, 4, v7")
        a("v_lshl_add_u32 v%d, v4, 6, v7" % (11 + s))
    a("v_and_b32 v4, 15, v1")
    a("v_lshrrev_b32 v5, 4, v1")
    a("v_lshrrev_b32 v6, 1, v5")
    a("v_lshrrev_b32 v7, 2, v4")
    a("v_lshl_add_u32 v7, v6, 3, v7")
    a("v_mul_u32_u24 v7, 384, v7")
    a("v_and_b32 v6, 1, v4")
    a("v_lshl_add_u32 v7, v6, 3, v7")
    a("v_add_u32 v7, 4096, v7")
    a("v_and_b32 v5, 1, v5")
    a("v_lshlrev_b32 v5, 1, v5")
    a("v_bfe_u32 v6, v4, 1, 1")
    a("v_add_u32 v5, v5, v6")
    a("v_lshrrev_b32 v6, 1, v2")
    a("v_mul_u32_u24 v6, 12, v6")
    a("v_add_u32 v5, v5, v6")
    a("v_lshrrev_b32 v6, 1, v4")
    a("v_and_b32 v6, 4, v6")
    for ft in range(3):
        a("v_add_u32 v16, %d, v5" % (4 * ft))
        a("v_xor_b32 v16, v16, v6")
        a("v_lshl_add_u32 v%d, v16, 4, v7" % (13 + ft))
    a("s_waitcnt lgkmcnt(0)")
    a("s_mov_b32 s16, s6")
    a("s_and_b32 s17, s7, 0xffff")
    a("s_mov_b32 s18, %d" % (2 * MB))
    a("s_mov_b32 s19, 0x00020000")
    a("s_mov_b32 s20, s4")
    a("s_and_b32 s21, s5, 0xffff")
    a("s_mov_b32 s22, %d" % (512 * 2752))
    a("s_mov_b32 s23, 0x00020000")
    a("s_lshl_b32 s13, s12, 10")
    a("s_mul_i32 s14, s12, 3072")
    a("s_add_u32 s14, s14, 4096")
    ACC = 32
    for r in range(ACC, ACC + 48):
        a("v_mov_b32 v%d, 0" % r)

    def dma(c):
        st = (c % NST) * STG
        a("s_add_u32 s24, s13, %d" % st)
        a("s_mov_b32 m0, s24")
        a("s_movk_i32 s25, %d" % (64 * c))
        a("buffer_load_dwordx4 v3, s[16:19], s25 offen lds")
        a("s_mov_b32 s26, %d" % (88064 * c))
        for jj in range(3):
            a("s_add_u32 s24, s14, %d" % (st + 1024 * jj))
            a("s_mov_b32 m0, s24")
            a("buffer_load_dwordx4 v%d, s[20:23], s26 offen lds" % (8 + jj))
    NCH = 16
    for c in range(NST - 1):
        dma(c)
    FR = 80
    for c in range(NCH):
        rem = min(NCH - 1, c + NST - 2) - c
        a("s_waitcnt vmcnt(%d)" % (4 * rem))
        a("s_barrier")
        st = (c % NST) * STG
        for s in range(2):
            b = FR + 16 * s
            a("ds_read_b128 v[%d:%d], v%d offset:%d" % (b, b + 3, 11 + s, st))
            for ft in range(3):
                for jh in range(2):
                    r = b + 4 + 4 * ft + 2 * jh
                    a("ds_read_b64_tr_b16 v[%d:%d], v%d offset:%d" % (r, r + 1, 13 + ft, st + s * 6144 + jh * 1536))
        if c + NST - 1 < NCH:
            dma(c + NST - 1)
        for s in range(2):
            b = FR + 16 * s
            for ft in range(3):
                a("s_waitcnt lgkmcnt(%d)" % ((1 - s) * 7 + (2 - ft) * 2))
                acc = ACC + 16 * ft
                a("v_mfma_f32_32x32x16_bf16 v[%d:%d], v[%d:%d], v[%d:%d], v[%d:%d]" % (
                    acc, acc + 15, b + 4 + 4 * ft, b + 7 + 4 * ft, b, b + 3, acc, acc + 15))
    a("v_and_b32 v4, 31, v1")
    a("v_and_b32 v6, 1, v2")
    a("v_lshl_add_u32 v4, v6, 5, v4")
    a("s_lshl_b32 s24, s9, 6")
    a("v_add_u32 v4, s24, v4")
    a("v_mul_u32_u24 v4, 2752, v4")
    a("v_lshrrev_b32 v5, 5, v1")
    a("v_lshl_add_u32 v4, v5, 3, v4")
    a("v_lshrrev_b32 v6, 1, v2")
    a("v_mul_u32_u24 v6, 192, v6")
    a("v_add_u32 v4, v4, v6")
    a("s_add_u32 s24, s10, %d" % H_OFF)
    a("v_add_u32 v4, s24, v4")
    a("s_mul_i32 s25, s8, 6")
    a("s_lshr_b32 s26, s12, 1")
    a("s_mul_i32 s26, s26, 3")
    a("s_add_u32 s25, s25, s26")
    for ft in range(3):
        a("s_add_u32 s26, s25, %d" % ft)
        a("s_cmp_ge_u32 s26, 43")
        a("s_cbranch_scc1 L_g1_done")
        acc = ACC + 16 * ft
        for r in range(16):
            a("v_max_f32 v%d, 0, v%d" % (acc + r, acc + r))
        for rg in range(4):
            r = acc + 4 * rg
            a("v_cvt_pk_bf16_f32 v%d, v%d, v%d" % (r, r, r + 1))
            a("v_cvt_pk_bf16_f32 v%d, v%d, v%d" % (r + 1, r + 2, r + 3))
            a("global_store_dwordx2 v4, v[%d:%d], s[6:7] offset:%d" % (r, r + 1, 64 * ft + 16 * rg))
    a.label("L_g1_done")
    a("s_endpgm")


def gen_k2(a):
    a.raw(".p2align 8")
    a.raw(".type mid_kernel,@function")
    a.label("mid_kernel")
    a("s_cmp_ge_u32 s2, 768")
    a("s_cbranch_scc1 L_k2_exit")
    a("s_cmp_ge_u32 s2, 256")
    a("s_cbranch_scc1 L_k2_conv")
    gen_gemm1(a)
    a.label("L_k2_conv")
    a.flush_hazards(4)
    a("s_sub_u32 s28, s2, 256")
    gen_conv(a)
    a.label("L_k2_exit")
    a("s_endpgm")


def gen_gemm2(a):
    NST = 6
    STG = 16384
    NCH = 22
    a("; ---------------- GEMM2 ----------------")
    a("s_load_dwordx2 s[4:5], s[0:1], 88")
    a("s_load_dwordx2 s[6:7], s[0:1], 112")
    a("s_load_dwordx2 s[28:29], s[0:1], 0")
    a("s_load_dwordx2 s[30:31], s[0:1], 96")
    a("s_and_b32 s9, s2, 7")
    a("s_lshr_b32 s8, s2, 5")
    a("s_bfe_u32 s10, s2, 0x20003")
    a("s_lshl_b32 s9, s9, 2")
    a("s_add_u32 s9, s9, s10")
    a("s_lshl_b32 s10, s8, 7")
    a("s_mul_i32 s11, s9, %d" % (64 * 2752))
    a("v_and_b32 v1, 63, v0")
    a("v_lshrrev_b32 v2, 6, v0")
    a("v_readfirstlane_b32 s12, v2")
    for jj in range(2):
        a("v_lshrrev_b32 v4, 3, v1")
        a("v_lshl_add_u32 v4, v2, 4, v4")
        a("v_add_u32 v4, %d, v4" % (8 * jj))
        a("v_and_b32 v5, 7, v1")
        a("v_lshrrev_b32 v6, 1, v4")
        a("v_and_b32 v6, 7, v6")
        a("v_xor_b32 v6, v6, v5")
        a("v_mul_u32_u24 v7, 2752, v4")
        a("v_lshl_add_u32 v7, v6, 4, v7")
        a("v_add_u32 v%d, s11, v7" % (8 + jj))
        a("v_lshlrev_b32 v6, 1, v4")
        a("v_and_b32 v6, 4, v6")
        a("v_xor_b32 v6, v6, v5")
        a("v_lshlrev_b32 v7, 10, v4")
        a("v_lshl_add_u32 v7, v6, 4, v7")
        a("v_add_u32 v%d, s10, v7" % (10 + jj))
    a("v_and_b32 v4, 31, v1")
    a("v_lshrrev_b32 v5, 5, v1")
    a("v_and_b32 v6, 1, v2")
    a("v_lshl_add_u32 v4, v6, 5, v4")
    a("v_lshrrev_b32 v6, 1, v4")
    a("v_and_b32 v6, 7, v6")
    for s in range(4):
        a("v_add_u32 v7, %d, v5" % (2 * s))
        a("v_xor_b32 v7, v7, v6")
        a("v_lshlrev_b32 v7, 4, v7")
        a("v_lshl_add_u32 v%d, v4, 7, v7" % (12 + s))
        a("v_add_u32 v%d, %d, v%d" % (16 + s, 3 * STG, 12 + s))
    a("v_and_b32 v4, 15, v1")
    a("v_lshrrev_b32 v5, 4, v1")
    a("v_lshrrev_b32 v6, 1, v5")
    a("v_lshrrev_b32 v7, 2, v4")
    a("v_lshl_add_u32 v7, v6, 3, v7")
    a("v_lshlrev_b32 v7, 7, v7")
    a("v_and_b32 v6, 1, v4")
    a("v_lshl_add_u32 v7, v6, 3, v7")
    a("v_add_u32 v7, 8192, v7")
    a("v_and_b32 v5, 1, v5")
    a("v_lshlrev_b32 v5, 1, v5")
    a("v_bfe_u32 v6, v4, 1, 1")
    a("v_add_u32 v5, v5, v6")
    a("v_lshrrev_b32 v6, 1, v2")
    a("v_lshl_add_u32 v5, v6, 2, v5")
    a("v_lshrrev_b32 v6, 1, v4")
    a("v_and_b32 v6, 4, v6")
    a("v_xor_b32 v5, v5, v6")
    a("v_lshl_add_u32 v20, v5, 4, v7")
    a("v_add_u32 v21, %d, v20" % (3 * STG))
    a("s_waitcnt lgkmcnt(0)")
    a("s_add_u32 s16, s6, %d" % H_OFF)
    a("s_addc_u32 s17, s7, 0")
    a("s_and_b32 s17, s17, 0xffff")
    a("s_mov_b32 s18, %d" % H_BYTES)
    a("s_mov_b32 s19, 0x00020000")
    a("s_mov_b32 s20, s4")
    a("s_and_b32 s21, s5, 0xffff")
    a("s_mov_b32 s22, %d" % (1376 * 1024))
    a("s_mov_b32 s23, 0x00020000")
    a("s_lshl_b32 s13, s12, 11")
    ACC = 32
    for r in range(ACC, ACC + 16):
        a("v_mov_b32 v%d, 0" % r)

    def dma(c):
        st = (c % NST) * STG
        a("s_movk_i32 s25, %d" % (128 * c))
        a("s_mov_b32 s26, %d" % (65536 * c))
        for jj in range(2):
            a("s_add_u32 s24, s13, %d" % (st + 1024 * jj))
            a("s_mov_b32 m0, s24")
            a("buffer_load_dwordx4 v%d, s[16:19], s25 offen lds" % (8 + jj))
        for jj in range(2):
            a("s_add_u32 s24, s13, %d" % (st + 8192 + 1024 * jj))
            a("s_mov_b32 m0, s24")
            a("buffer_load_dwordx4 v%d, s[20:23], s26 offen lds" % (10 + jj))
    for c in range(NST - 1):
        dma(c)
    a("v_and_b32 v4, 31, v1")
    a("v_and_b32 v6, 1, v2")
    a("v_lshl_add_u32 v4, v6, 5, v4")
    a("s_lshl_b32 s24, s9, 6")
    a("v_add_u32 v4, s24, v4")
    a("v_lshrrev_b32 v5, 5, v1")
    a("v_lshrrev_b32 v6, 1, v2")
    a("v_lshlrev_b32 v6, 5, v6")
    a("v_lshl_add_u32 v6, v5, 2, v6")
    a("s_lshl_b32 s24, s8, 6")
    a("v_add_u32 v6, s24, v6")
    a("v_lshlrev_b32 v22, 10, v4")
    a("v_lshl_add_u32 v22, v6, 1, v22")
    a("v_lshlrev_b32 v23, 12, v6")
    a("v_lshl_add_u32 v23, v4, 1, v23")
    a("v_add_u32 v23, %d, v23" % AT_OFF)
    XR = 48
    ATR = 56
    for rg in range(4):
        a("global_load_dwordx2 v[%d:%d], v22, s[28:29] offset:%d" % (XR + 2 * rg, XR + 2 * rg + 1, 16 * rg))
    for rg in range(4):
        if rg:
            a("v_add_u32 v23, %d, v23" % (8 * 4096))
        for r in range(4):
            if r < 1:
                a("global_load_ushort v%d, v23, s[6:7]" % (ATR + 4 * rg + r))
            else:
                pass
        a("v_add_u32 v24, 4096, v23")
        a("global_load_ushort v%d, v24, s[6:7]" % (ATR + 4 * rg + 1))
        a("v_add_u32 v24, 8192, v23")
        a("global_load_ushort v%d, v24, s[6:7]" % (ATR + 4 * rg + 2))
        a("v_add_u32 v24, 12288, v23")
        a("global_load_ushort v%d, v24, s[6:7]" % (ATR + 4 * rg + 3))
    NEXTRA = 20
    FR = 80
    for c in range(NCH):
        rem = min(NCH - 1, c + NST - 2) - c
        cnt = 4 * rem
        if c < NST - 1:
            cnt += NEXTRA
        cnt = min(cnt, 63)
        a("s_waitcnt vmcnt(%d)" % cnt)
        a("s_barrier")
        stn = c % NST
        hi = stn >= 3
        st = (stn - 3 if hi else stn) * STG
        for s in range(4):
            b = FR + 8 * s
            a("ds_read_b128 v[%d:%d], v%d offset:%d" % (b, b + 3, (16 if hi else 12) + s, st))
            for jh in range(2):
                r = b + 4 + 2 * jh
                a("ds_read_b64_tr_b16 v[%d:%d], v%d offset:%d" % (r, r + 1, 21 if hi else 20, st + s * 2048 + jh * 512))
        if c + NST - 1 < NCH:
            dma(c + NST - 1)
        for s in range(4):
            b = FR + 8 * s
            a("s_waitcnt lgkmcnt(%d)" % ((3 - s) * 3))
            a("v_mfma_f32_32x32x16_bf16 v[%d:%d], v[%d:%d], v[%d:%d], v[%d:%d]" % (
                ACC, ACC + 15, b + 4, b + 7, b, b + 3, ACC, ACC + 15))
    T = 112
    for rg in range(4):
        r = ACC + 4 * rg
        a("v_cvt_pk_bf16_f32 v%d, v%d, v%d" % (T, r, r + 1))
        a("v_cvt_pk_bf16_f32 v%d, v%d, v%d" % (T + 1, r + 2, r + 3))
        x = XR + 2 * rg
        a("v_lshlrev_b32 v%d, 16, v%d" % (T + 2, x))
        a("v_and_b32 v%d, 0xffff0000, v%d" % (T + 3, x))
        a("v_lshlrev_b32 v%d, 16, v%d" % (T + 4, x + 1))
        a("v_and_b32 v%d, 0xffff0000, v%d" % (T + 5, x + 1))
        for k in range(4):
            a("v_lshlrev_b32 v%d, 16, v%d" % (ATR + 4 * rg + k, ATR + 4 * rg + k))
        for k in range(4):
            a("v_add_f32 v%d, v%d, v%d" % (T + 2 + k, T + 2 + k, ATR + 4 * rg + k))
        a("v_cvt_pk_bf16_f32 v%d, v%d, v%d" % (T + 6, T + 2, T + 3))
        a("v_cvt_pk_bf16_f32 v%d, v%d, v%d" % (T + 7, T + 4, T + 5))
        a("v_lshlrev_b32 v%d, 16, v%d" % (T + 2, T + 6))
        a("v_and_b32 v%d, 0xffff0000, v%d" % (T + 3, T + 6))
        a("v_lshlrev_b32 v%d, 16, v%d" % (T + 4, T + 7))
        a("v_and_b32 v%d, 0xffff0000, v%d" % (T + 5, T + 7))
        a("v_lshlrev_b32 v%d, 16, v%d" % (T + 8, T))
        a("v_and_b32 v%d, 0xffff0000, v%d" % (T + 9, T))
        a("v_lshlrev_b32 v%d, 16, v%d" % (T + 10, T + 1))
        a("v_and_b32 v%d, 0xffff0000, v%d" % (T + 11, T + 1))
        for k in range(4):
            a("v_add_f32 v%d, v%d, v%d" % (T + 2 + k, T + 2 + k, T + 8 + k))
        o = 124 + 2 * rg
        a("v_cvt_pk_bf16_f32 v%d, v%d, v%d" % (o, T + 2, T + 3))
        a("v_cvt_pk_bf16_f32 v%d, v%d, v%d" % (o + 1, T + 4, T + 5))
        a("global_store_dwordx2 v22, v[%d:%d], s[30:31] offset:%d" % (o, o + 1, 16 * rg))
    a("s_endpgm")


def gen_k3(a):
    a.raw(".p2align 8")
    a.raw(".type fin_kernel,@function")
    a.label("fin_kernel")
    a("s_cmp_ge_u32 s2, 256")
    a("s_cbranch_scc1 L_k3_exit")
    gen_gemm2(a)
    a.label("L_k3_exit")
    a("s_endpgm")


def desc(name, vgpr, sgpr=40):
    return """.amdhsa_kernel %s
  .amdhsa_next_free_vgpr %d
  .amdhsa_next_free_sgpr %d
  .amdhsa_accum_offset %d
  .amdhsa_group_segment_fixed_size 0
  .amdhsa_kernarg_size 120
  .amdhsa_user_sgpr_count 2
  .amdhsa_user_sgpr_kernarg_segment_ptr 1
  .amdhsa_system_sgpr_workgroup_id_x 1
.end_amdhsa_kernel
""" % (name, vgpr, sgpr, (vgpr + 3) // 4 * 4)


def main():
    ref = open(os.path.join(os.path.dirname(os.path.abspath(__file__)), "..", "cdna_kernels", NAME + ".s.ref")).read()
    head = []
    for line in ref.split("\n"):
        if line.startswith("; @launch") or line.startswith("; Override") or line.startswith("; grid="):
            continue
        if line.startswith(";"):
            head.append(line)
        else:
            break
    out = "\n".join(head) + "\n"
    out += "; @launch kernel=prep_kernel grid=(640,1,1) block=(256,1,1) lds=17408\n"
    out += "; @launch kernel=mid_kernel grid=(768,1,1) block=(256,1,1) lds=65536\n"
    out += "; @launch kernel=fin_kernel grid=(256,1,1) block=(256,1,1) lds=98304\n"
    out += '.amdgcn_target "amdgcn-amd-amdhsa--gfx950"\n.text\n'
    out += ".globl prep_kernel\n.globl mid_kernel\n.globl fin_kernel\n"
    for g in (gen_k1, gen_k2, gen_k3):
        a = Asm()
        g(a)
        out += a.text()
    out += '.section .rodata,"a"\n.p2align 6\n'
    out += desc("prep_kernel", 100)
    out += ".p2align 6\n" + desc("mid_kernel", 152)
    out += ".p2align 6\n" + desc("fin_kernel", 132)
    path = os.path.join(os.path.dirname(os.path.abspath(__file__)), "..", "cdna_kernels", NAME + ".s")
    open(path, "w").write(out)
    print("wrote", path, len(out))


if __name__ == "__main__":
    main()
```

```python
import sys
import os
sys.path.insert(0, os.path.dirname(os.path.abspath(__file__)))
from asmlib import Asm

NAME = "parallel_sum__ssm_conv_s4__dense_activation_relu__prompt"
MB = 1 << 20
XN_OFF = 0
XNT_OFF = 2 * MB
KR_OFF = 4 * MB
KR_PITCH = 4096
AT_OFF = 9 * MB
H_OFF = 12 * MB
H_BYTES = 2048 * 2752

LOG2E = "0x3fb8aa3b"
INV2PI = "0x3e22f983"


DEBUG = int(os.environ.get("DBG", "0"))
DBGWG = {}
for kv in os.environ.get("DBGWG", "").split(","):
    if kv:
        k, v = kv.split("=")
        DBGWG[k] = int(v)


LAUNCH = {"kgen": 0, "ln": 0, "conv": 1, "g1": 1, "g2": 2}


def stamp(a, idx):
    if DEBUG:
        if idx == 0:
            a("s_memrealtime s[60:61]")
        a("s_memtime s[%d:%d]" % (44 + 2 * idx, 45 + 2 * idx))


def dump(a, tag, n, slot):
    if not DEBUG or tag not in DBGWG:
        return
    stamp(a, n)
    a("s_load_dwordx2 s[42:43], s[0:1], 112")
    a("s_memrealtime s[62:63]")
    a("s_waitcnt lgkmcnt(0)")
    a("s_lshl_b32 s40, s2, 3")
    a("s_add_u32 s40, s40, %d" % (64 * MB + 65536 * LAUNCH[tag]))
    a("v_mov_b32 v2, s40")
    a("v_mov_b32 v4, s60")
    a("v_mov_b32 v5, s62")
    a("global_store_dwordx2 v2, v[4:5], s[42:43]")
    a("s_cmp_lg_u32 s2, %d" % DBGWG[tag])
    a("s_cbranch_scc1 L_dbg_%s" % tag)
    a("v_cmp_eq_u32 vcc, 0, v0")
    a("s_and_saveexec_b64 s[40:41], vcc")
    a("s_cbranch_execz L_dbg_%s" % tag)
    a("s_load_dwordx2 s[42:43], s[0:1], 104")
    a("s_memrealtime s[40:41]")
    a("s_waitcnt lgkmcnt(0)")
    a("v_mov_b32 v2, %d" % (slot * 64))
    for i in range(n + 1):
        a("v_mov_b32 v3, s%d" % (44 + 2 * i))
        a("global_store_dword v2, v3, s[42:43] offset:%d" % (4 * i))
    a("v_mov_b32 v3, s40")
    a("global_store_dword v2, v3, s[42:43] offset:60")
    a.label("L_dbg_%s" % tag)


def fhex(x):
    import struct
    return "0x%08x" % struct.unpack("<I", struct.pack("<f", x))[0]


def gen_kgen(a):
    DP = "row_mask:0xf bank_mask:0xf"
    TAB = 12288
    a("; ---------------- K-gen ----------------")
    stamp(a, 0)
    a("s_load_dwordx8 s[8:15], s[0:1], 8")
    a("s_load_dwordx4 s[16:19], s[0:1], 40")
    a("s_load_dwordx2 s[20:21], s[0:1], 56")
    a("s_load_dwordx2 s[22:23], s[0:1], 112")
    a("v_and_b32 v1, 63, v0")
    a("v_lshrrev_b32 v2, 6, v0")
    a("v_and_b32 v3, 15, v1")
    a("v_lshrrev_b32 v4, 4, v1")
    a("s_lshl_b32 s3, s28, 8")
    a("v_lshlrev_b32 v5, 6, v2")
    a("v_lshl_add_u32 v5, v4, 4, v5")
    a("v_and_b32 v6, 7, v3")
    a("v_lshl_add_u32 v5, v6, 1, v5")
    a("v_add_u32 v5, s3, v5")
    a("s_lshl_b32 s4, s28, 1")
    a("v_mov_b32 v6, s4")
    a("s_waitcnt lgkmcnt(0)")
    a("global_load_ushort v7, v6, s[20:21]")
    for k in range(6):
        a("global_load_ushort v%d, v5, s[%d:%d]" % (8 + k, 8 + 2 * k, 9 + 2 * k))

    def rows(i, o0, o1, o2, t0, t1):
        a("v_lshrrev_b32 v%d, 3, v%d" % (o0, i))
        a("v_and_b32 v%d, 7, v%d" % (t0, i))
        a("v_lshl_add_u32 v%d, v%d, 7, v%d" % (o0, o0, t0))
        a("v_lshrrev_b32 v%d, 2, v%d" % (o1, i))
        a("v_and_b32 v%d, 3, v%d" % (t0, i))
        a("v_lshlrev_b32 v%d, 1, v%d" % (t0, t0))
        a("v_lshl_add_u32 v%d, v%d, 7, v%d" % (o1, o1, t0))
        a("v_add_u32 v%d, 0x100, v%d" % (o1, o1))
        a("v_subrev_u32 v%d, 8, v%d" % (t0, i))
        a("v_lshrrev_b32 v%d, 1, v%d" % (t0, t0))
        a("v_and_b32 v%d, 1, v%d" % (t1, i))
        a("v_lshlrev_b32 v%d, 2, v%d" % (t1, t1))
        a("v_lshl_add_u32 v%d, v%d, 7, v%d" % (t0, t0, t1))
        a("v_add_u32 v%d, 0x200, v%d" % (t0, t0))
        a("v_cmp_gt_u32 vcc, 8, v%d" % i)
        a("v_cndmask_b32 v%d, v%d, v%d, vcc" % (o1, t0, o1))
        if o2 is not None:
            a("v_lshlrev_b32 v%d, 7, v%d" % (o2, i))
            a("v_add_u32 v%d, 0x400, v%d" % (o2, o2))
    rows(3, 32, 33, 34, 35, 36)
    a("v_lshlrev_b32 v35, 3, v3")
    for r in range(32, 36):
        a("v_cvt_f32_u32 v%d, v%d" % (r, r))
    a("v_lshrrev_b32 v20, 4, v0")
    a("v_and_b32 v21, 15, v0")
    rows(20, 60, 61, None, 22, 23)
    a("s_movk_i32 s7, 16255")
    a("s_mov_b32 s24, 0x3f7f3f7f")
    for r in (60, 61):
        a("v_lshl_add_u32 v%d, v21, 3, v%d" % (r, r))
        a("v_cvt_f32_u32 v%d, v%d" % (r, r))
        a("v_lshrrev_b32 v%d, 16, v%d" % (r, r))
        a("v_max_u32 v%d, s7, v%d" % (r, r))
        a("v_subrev_u32 v%d, s7, v%d" % (r, r))
        a("v_lshlrev_b32 v%d, 1, v%d" % (r, r))
    a("v_lshlrev_b32 v62, 1, v0")
    a("v_add_u32 v62, %d, v62" % (2 * 1281))
    a("v_lshlrev_b32 v22, 3, v0")
    a("v_sub_u32 v22, 2047, v22")
    for jj in range(4):
        a("v_subrev_u32 v23, %d, v22" % (2 * jj))
        a("v_subrev_u32 v24, %d, v22" % (2 * jj + 1))
        a("v_cvt_f32_u32 v23, v23")
        a("v_cvt_f32_u32 v24, v24")
        a("v_cvt_pk_bf16_f32 v23, v23, v24")
        a("v_pk_sub_u16 v23, v23, s24 clamp")
        a("v_lshlrev_b32 v24, 1, v23")
        a("v_and_b32 v%d, 0xffff, v24" % (64 + 2 * jj))
        a("v_lshrrev_b32 v%d, 15, v23" % (65 + 2 * jj))
    for r in range(36, 48):
        a("v_mov_b32 v%d, 0" % r)
    a("s_mov_b32 s5, %s" % LOG2E)
    a("s_mov_b32 s6, %s" % INV2PI)
    a("s_waitcnt vmcnt(6)")
    stamp(a, 1)
    a("v_lshlrev_b32 v7, 16, v7")
    a("v_mul_f32 v7, s5, v7")
    a("v_exp_f32 v7, v7")
    a("v_cvt_pk_bf16_f32 v7, v7, v7")
    a("v_lshlrev_b32 v7, 16, v7")
    a("s_waitcnt vmcnt(0)")
    for k in range(6):
        a("v_lshlrev_b32 v%d, 16, v%d" % (8 + k, 8 + k))
    for k in range(4):
        a("v_mul_f32 v%d, v7, v%d" % (8 + k, 8 + k))
    RHO, TH, CR, CI, NCI = 48, 49, 50, 51, 52
    a("v_mul_f32 v%d, s5, v8" % RHO)
    a("v_mul_f32 v%d, s6, v9" % TH)
    a("v_mul_f32 v%d, v12, v10" % CR)
    a("v_mul_f32 v%d, v12, v11" % CI)
    a("v_fma_f32 v%d, -v13, v11, v%d" % (CR, CR))
    a("v_fma_f32 v%d, v13, v10, v%d" % (CI, CI))
    a("v_xor_b32 v%d, 0x80000000, v%d" % (NCI, CI))
    stamp(a, 2)
    pend = []
    for g in range(9):
        V = []
        M = []
        if g < 8:
            bc = "row_newbcast:%d %s" % (g, DP)
            L = [35, 32, 33, 34]
            o = 80 + 20 * (g & 1)
            for X in range(4):
                V.append("v_mul_f32_dpp v%d, v%d, v%d %s" % (o + 4 * X, TH, L[X], bc))
                V.append("v_mul_f32_dpp v%d, v%d, v%d %s" % (o + 1 + 4 * X, RHO, L[X], bc))
            for X in range(4):
                V.append("v_fract_f32 v%d, v%d" % (o + 4 * X, o + 4 * X))
                V.append("v_exp_f32 v%d, v%d" % (o + 1 + 4 * X, o + 1 + 4 * X))
            for X in range(4):
                V.append("v_cos_f32 v%d, v%d" % (o + 2 + 4 * X, o + 4 * X))
                V.append("v_sin_f32 v%d, v%d" % (o + 3 + 4 * X, o + 4 * X))
            V.append("v_mul_f32 v%d, v%d, v%d" % (o + 2, o + 1, o + 2))
            V.append("v_mul_f32 v%d, v%d, v%d" % (o + 3, o + 1, o + 3))
            for X in range(1, 4):
                V.append("v_mul_f32 v%d, v%d, v%d" % (o + 2 + 4 * X, o + 1 + 4 * X, o + 2 + 4 * X))
                V.append("v_mul_f32 v%d, -v%d, v%d" % (o + 3 + 4 * X, o + 1 + 4 * X, o + 3 + 4 * X))
            V.append("v_mul_f32_dpp v%d, v%d, v%d %s" % (o + 16, CR, o + 2, bc))
            V.append("v_mul_f32_dpp v%d, v%d, v%d %s" % (o + 17, CR, o + 3, bc))
            V.append("v_fmac_f32_dpp v%d, v%d, v%d %s" % (o + 16, NCI, o + 3, bc))
            V.append("v_fmac_f32_dpp v%d, v%d, v%d %s" % (o + 17, CI, o + 2, bc))
            for T in range(3):
                X = T + 1
                acc = 36 + 4 * T
                M.append("v_mfma_f32_16x16x4_f32 v[%d:%d], v%d, v%d, v[%d:%d]" % (acc, acc + 3, o + 2 + 4 * X, o + 16, acc, acc + 3))
            for T in range(3):
                X = T + 1
                acc = 36 + 4 * T
                M.append("v_mfma_f32_16x16x4_f32 v[%d:%d], v%d, v%d, v[%d:%d]" % (acc, acc + 3, o + 3 + 4 * X, o + 17, acc, acc + 3))
        pos = [1, 8, 14, 19, 24, 30]
        k = 0
        for vi, v in enumerate(V):
            if k < len(pend) and vi == pos[k]:
                a(pend[k])
                k += 1
            a(v)
        while k < len(pend):
            a(pend[k])
            k += 1
        pend = M
    stamp(a, 3)
    a("v_mul_u32_u24 v5, 768, v2")
    a("v_lshl_add_u32 v5, v4, 6, v5")
    a("v_add_u32 v5, v5, v3")
    a("v_lshlrev_b32 v5, 2, v5")
    for T in range(3):
        for r in range(4):
            a("ds_write_b32 v5, v%d offset:%d" % (36 + 4 * T + r, (16 * T + r) * 64))
    a("v_lshlrev_b32 v5, 2, v0")
    a("s_waitcnt lgkmcnt(0)")
    a("s_barrier")
    for k in range(3):
        for w in range(4):
            a("ds_read_b32 v%d, v5 offset:%d" % (8 + 4 * k + w, (k * 256 + w * 768) * 4))
    a("s_lshl_b32 s4, s28, 12")
    a("s_add_u32 s4, s4, %d" % KR_OFF)
    a("v_lshlrev_b32 v6, 4, v0")
    a("v_add_u32 v6, s4, v6")
    for k in range(3):
        b = 8 + 4 * k
        a("s_waitcnt lgkmcnt(%d)" % (8 - 4 * k + k))
        a("v_add_f32 v%d, v%d, v%d" % (b, b, b + 1))
        a("v_add_f32 v%d, v%d, v%d" % (b + 2, b + 2, b + 3))
        a("v_add_f32 v%d, v%d, v%d" % (b, b, b + 2))
        a("v_cvt_pk_bf16_f32 v%d, v%d, v%d" % (b, b, b))
        a("ds_write_b16 v%d, v%d offset:%d" % (60 + k, b, TAB))
    a("s_waitcnt lgkmcnt(0)")
    a("s_barrier")
    stamp(a, 4)
    for jj in range(4):
        a("ds_read_u16 v%d, v%d offset:%d" % (24 + jj, 64 + 2 * jj, TAB))
        a("ds_read_u16 v%d, v%d offset:%d" % (28 + jj, 65 + 2 * jj, TAB))
    for jj in range(4):
        a("s_waitcnt lgkmcnt(%d)" % (6 - 2 * jj))
        a("v_lshl_or_b32 v%d, v%d, 16, v%d" % (24 + jj, 28 + jj, 24 + jj))
    a("global_store_dwordx4 v6, v[24:27], s[22:23]")
    dump(a, "kgen", 5, 0)
    a("s_endpgm")


def gen_ln(a):
    a("; ---------------- LN ----------------")
    stamp(a, 0)
    a("s_load_dwordx2 s[4:5], s[0:1], 0")
    a("s_load_dwordx2 s[6:7], s[0:1], 112")
    a("s_sub_u32 s3, s2, 512")
    a("s_and_b32 s8, s3, 7")
    a("s_lshr_b32 s3, s3, 3")
    a("s_lshl_b32 s8, s8, 8")
    a("s_lshl_b32 s3, s3, 4")
    a("s_add_u32 s3, s3, s8")
    a("v_and_b32 v1, 63, v0")
    a("v_lshrrev_b32 v2, 6, v0")
    a("v_lshlrev_b32 v3, 2, v2")
    a("v_add_u32 v3, s3, v3")
    a("v_lshlrev_b32 v3, 10, v3")
    a("v_lshl_add_u32 v3, v1, 4, v3")
    a("s_waitcnt lgkmcnt(0)")
    for rr in range(4):
        a("global_load_dwordx4 v[%d:%d], v3, s[4:5] offset:%d" % (8 + 4 * rr, 11 + 4 * rr, 1024 * rr))
    a("s_mov_b32 s8, %s" % fhex(1.0 / 512))
    a("s_mov_b32 s9, %s" % fhex(1e-5))
    for rr in range(4):
        a("s_waitcnt vmcnt(%d)" % (3 - rr))
        for k in range(4):
            a("v_lshlrev_b32 v%d, 16, v%d" % (32 + 8 * rr + 2 * k, 8 + 4 * rr + k))
            a("v_and_b32 v%d, 0xffff0000, v%d" % (33 + 8 * rr + 2 * k, 8 + 4 * rr + k))
    stamp(a, 1)
    for rr in range(4):
        b = 32 + 8 * rr
        a("v_add_f32 v%d, v%d, v%d" % (24 + rr, b, b + 1))
    for k in range(2, 8):
        for rr in range(4):
            a("v_add_f32 v%d, v%d, v%d" % (24 + rr, 24 + rr, 32 + 8 * rr + k))

    def wave_reduce(regs):
        for sh in ("row_shr:1", "row_shr:2", "row_shr:4", "row_shr:8"):
            for r in regs:
                a("v_add_f32_dpp v%d, v%d, v%d %s row_mask:0xf bank_mask:0xf bound_ctrl:0" % (r, r, r, sh))
        for r in regs:
            a("v_add_f32_dpp v%d, v%d, v%d row_bcast:15 row_mask:0xa bank_mask:0xf" % (r, r, r))
        for r in regs:
            a("v_add_f32_dpp v%d, v%d, v%d row_bcast:31 row_mask:0xc bank_mask:0xf" % (r, r, r))
    wave_reduce([24, 25, 26, 27])
    for rr in range(4):
        a("v_mul_f32 v%d, s8, v%d" % (24 + rr, 24 + rr))
    for rr in range(4):
        a("v_readlane_b32 s%d, v%d, 63" % (10 + rr, 24 + rr))
    for rr in range(4):
        b = 32 + 8 * rr
        a("v_subrev_f32 v%d, s%d, v%d" % (64 + rr, 10 + rr, b))
    for rr in range(4):
        a("v_mul_f32 v%d, v%d, v%d" % (28 + rr, 64 + rr, 64 + rr))
    for k in range(1, 8):
        for rr in range(4):
            a("v_subrev_f32 v%d, s%d, v%d" % (64 + rr, 10 + rr, 32 + 8 * rr + k))
        for rr in range(4):
            a("v_fmac_f32 v%d, v%d, v%d" % (28 + rr, 64 + rr, 64 + rr))
    wave_reduce([28, 29, 30, 31])
    for rr in range(4):
        a("v_mul_f32 v%d, s8, v%d" % (28 + rr, 28 + rr))
    for rr in range(4):
        a("v_cvt_pk_bf16_f32 v%d, v%d, v%d" % (28 + rr, 28 + rr, 24 + rr))
    for rr in range(4):
        a("v_and_b32 v%d, 0xffff0000, v%d" % (24 + rr, 28 + rr))
        a("v_lshlrev_b32 v%d, 16, v%d" % (28 + rr, 28 + rr))
    for rr in range(4):
        a("v_add_f32 v%d, s9, v%d" % (28 + rr, 28 + rr))
    for rr in range(4):
        a("v_cvt_pk_bf16_f32 v%d, v%d, v%d" % (28 + rr, 28 + rr, 28 + rr))
    for rr in range(4):
        a("v_lshlrev_b32 v%d, 16, v%d" % (28 + rr, 28 + rr))
    for rr in range(4):
        a("v_sqrt_f32 v%d, v%d" % (28 + rr, 28 + rr))
    for rr in range(4):
        a("v_cvt_pk_bf16_f32 v%d, v%d, v%d" % (28 + rr, 28 + rr, 28 + rr))
    for rr in range(4):
        a("v_lshlrev_b32 v%d, 16, v%d" % (28 + rr, 28 + rr))
    for rr in range(4):
        a("v_rcp_f32 v%d, v%d" % (64 + rr, 28 + rr))
    for rr in range(4):
        a("v_readlane_b32 s%d, v%d, 63" % (10 + rr, 24 + rr))
        a("v_readlane_b32 s%d, v%d, 63" % (14 + rr, 28 + rr))
        a("v_readlane_b32 s%d, v%d, 63" % (18 + rr, 64 + rr))
    stamp(a, 2)
    for rr in range(4):
        b = 32 + 8 * rr
        for k in range(4):
            x0, x1 = b + 2 * k, b + 2 * k + 1
            a("v_subrev_f32 v%d, s%d, v%d" % (x0, 10 + rr, x0))
            a("v_subrev_f32 v%d, s%d, v%d" % (x1, 10 + rr, x1))
        for k in range(4):
            x0, x1 = b + 2 * k, b + 2 * k + 1
            a("v_cvt_pk_bf16_f32 v%d, v%d, v%d" % (68 + k, x0, x1))
        for k in range(4):
            x0, x1 = b + 2 * k, b + 2 * k + 1
            a("v_lshlrev_b32 v%d, 16, v%d" % (x0, 68 + k))
            a("v_and_b32 v%d, 0xffff0000, v%d" % (x1, 68 + k))
        for k in range(8):
            a("v_mul_f32 v%d, s%d, v%d" % (72 + k, 18 + rr, b + k))
        for k in range(8):
            a("v_fma_f32 v%d, -v%d, s%d, v%d" % (b + k, 72 + k, 14 + rr, b + k))
        for k in range(8):
            a("v_fma_f32 v%d, v%d, s%d, v%d" % (72 + k, b + k, 18 + rr, 72 + k))
        for k in range(4):
            a("v_cvt_pk_bf16_f32 v%d, v%d, v%d" % (8 + 4 * rr + k, 72 + 2 * k, 73 + 2 * k))
    a("v_lshlrev_b32 v5, 2, v2")
    a("v_mul_u32_u24 v5, 1088, v5")
    a("v_lshl_add_u32 v5, v1, 4, v5")
    for rr in range(4):
        a("global_store_dwordx4 v3, v[%d:%d], s[6:7] offset:%d" % (8 + 4 * rr, 11 + 4 * rr, 1024 * rr))
        a("ds_write_b128 v5, v[%d:%d] offset:%d" % (8 + 4 * rr, 11 + 4 * rr, 1088 * rr))
    a("s_waitcnt lgkmcnt(0)")
    a("s_barrier")
    stamp(a, 3)
    a("v_and_b32 v6, 15, v1")
    a("v_lshrrev_b32 v7, 4, v1")
    a("v_lshrrev_b32 v24, 2, v6")
    a("v_mul_u32_u24 v24, 1088, v24")
    a("v_and_b32 v25, 3, v6")
    a("v_lshlrev_b32 v25, 3, v25")
    a("v_add_u32 v24, v24, v25")
    a("v_lshlrev_b32 v25, 7, v2")
    a("v_lshl_add_u32 v25, v7, 4, v25")
    a("v_lshl_add_u32 v24, v25, 1, v24")
    for pp in range(2):
        for rb in range(4):
            r = 32 + 8 * pp + 2 * rb
            a("ds_read_b64_tr_b16 v[%d:%d], v24 offset:%d" % (r, r + 1, rb * 4 * 1088 + pp * 128))
    a("v_add_u32 v25, v25, v6")
    a("v_lshlrev_b32 v25, 12, v25")
    a("s_lshl_b32 s3, s3, 1")
    a("s_add_u32 s3, s3, %d" % XNT_OFF)
    a("v_add_u32 v25, s3, v25")
    a("v_add_u32 v26, %d, v25" % (64 * 4096))
    a("s_waitcnt lgkmcnt(4)")
    a("global_store_dwordx4 v25, v[32:35], s[6:7]")
    a("global_store_dwordx4 v25, v[36:39], s[6:7] offset:16")
    a("s_waitcnt lgkmcnt(0)")
    a("global_store_dwordx4 v26, v[40:43], s[6:7]")
    a("global_store_dwordx4 v26, v[44:47], s[6:7] offset:16")
    dump(a, "ln", 4, 1)
    a("s_endpgm")


def gen_k1(a):
    a.raw(".p2align 8")
    a.raw(".type prep_kernel,@function")
    a.label("prep_kernel")
    a("s_cmp_ge_u32 s2, 640")
    a("s_cbranch_scc1 L_k1_exit")
    a("s_cmp_ge_u32 s2, 512")
    a("s_cbranch_scc1 L_k1_ln")
    a("s_mov_b32 s28, s2")
    gen_kgen(a)
    a.label("L_k1_ln")
    a("s_setprio 3")
    gen_ln(a)
    a.label("L_k1_exit")
    a("s_endpgm")


def gen_conv(a):
    U = 512
    KC0 = 4608
    RED = 13056
    a("; ---------------- conv ----------------")
    stamp(a, 0)
    a("s_load_dwordx2 s[4:5], s[0:1], 64")
    a("s_load_dwordx2 s[6:7], s[0:1], 112")
    a("v_and_b32 v1, 63, v0")
    a("v_lshrrev_b32 v2, 6, v0")
    a("v_and_b32 v3, 15, v1")
    a("v_lshrrev_b32 v4, 4, v1")
    a("s_lshl_b32 s3, s28, 12")
    a("s_add_u32 s8, s3, %d" % XNT_OFF)
    a("s_mul_i32 s9, s28, %d" % KR_PITCH)
    a("s_add_u32 s9, s9, %d" % KR_OFF)
    a("v_lshlrev_b32 v5, 4, v0")
    a("v_add_u32 v6, s8, v5")
    a("v_add_u32 v7, s9, v5")
    a("s_lshl_b32 s10, s28, 1")
    a("v_mov_b32 v8, s10")
    a("s_waitcnt lgkmcnt(0)")
    a("v_subrev_u32 v10, 4, v5")
    a("v_max_i32 v10, 0, v10")
    a("v_add_u32 v10, s9, v10")
    a("global_load_dwordx4 v[12:15], v6, s[6:7]")
    a("global_load_dwordx4 v[16:19], v7, s[6:7]")
    a("global_load_dword v20, v10, s[6:7]")
    a("global_load_ushort v9, v8, s[4:5]")
    for r in range(28, 32):
        a("v_mov_b32 v%d, 0" % r)
    a("v_and_b32 v10, 31, v0")
    a("v_lshlrev_b32 v10, 4, v10")
    a("ds_write_b128 v10, v[28:31]")
    a("v_and_b32 v10, 15, v0")
    a("v_min_u32 v11, 14, v10")
    a("v_lshlrev_b32 v11, 2, v11")
    a("ds_write_b32 v11, v28 offset:%d" % (KC0 + 4100))
    a("v_lshlrev_b32 v10, 2, v10")
    a("v_add_u32 v10, %d, v10" % (KC0 + 4160 + 4096))
    a("v_mov_b32 v11, %d" % (KC0 + 4096))
    a("s_movk_i32 s14, 255")
    a("v_cmp_eq_u32 vcc, s14, v0")
    a("v_cndmask_b32 v38, v10, v11, vcc")
    a("v_cndmask_b32 v39, 0, 1, vcc")
    a("v_lshrrev_b32 v10, 1, v4")
    a("v_and_b32 v11, 1, v4")
    a("v_sub_u32 v32, v3, v10")
    a("v_lshlrev_b32 v32, 5, v32")
    a("v_lshl_add_u32 v32, v11, 4, v32")
    a("v_lshlrev_b32 v33, 6, v2")
    a("v_sub_u32 v32, v32, v33")
    a("v_add_u32 v32, %d, v32" % (U - 256))
    a("v_and_b32 v33, 1, v3")
    a("v_lshlrev_b32 v34, 5, v2")
    a("v_lshl_add_u32 v34, v10, 4, v34")
    a("v_add_u32 v34, v34, v3")
    a("v_add_u32 v34, v34, v33")
    a("v_lshlrev_b32 v35, 3, v11")
    a("v_sub_u32 v34, v35, v34")
    a("v_add_u32 v34, %d, v34" % (2048 - 384))
    a("v_lshlrev_b32 v34, 1, v34")
    a("v_mul_u32_u24 v33, 4160, v33")
    a("v_add_u32 v34, v34, v33")
    a("v_add_u32 v34, %d, v34" % KC0)
    a("v_subrev_u32 v35, 1024, v34")
    a("v_subrev_u32 v36, 2048, v34")
    a("v_subrev_u32 v37, 3072, v34")
    a("s_waitcnt vmcnt(3)")
    a("ds_write_b128 v5, v[12:15] offset:%d" % U)
    a("s_waitcnt vmcnt(1)")
    a("ds_write_b128 v5, v[16:19] offset:%d" % (KC0 + 4160))
    a("v_cmp_eq_u32 vcc, 0, v0")
    a("v_cndmask_b32 v20, v20, 0, vcc")
    a("v_alignbit_b32 v24, v16, v20, 16")
    a("v_alignbit_b32 v25, v17, v16, 16")
    a("v_alignbit_b32 v26, v18, v17, 16")
    a("v_alignbit_b32 v27, v19, v18, 16")
    a("ds_write_b128 v5, v[24:27] offset:%d" % KC0)
    a("v_lshrrev_b32 v21, 16, v19")
    a("v_mul_u32_u24 v21, v21, v39")
    a("ds_write_b32 v38, v21")
    a("s_waitcnt vmcnt(0) lgkmcnt(0)")
    a("s_barrier")
    stamp(a, 1)
    ACC, BF, AR = 40, 72, 136
    for mi in range(16):
        a("ds_read_b128 v[%d:%d], v32 offset:%d" % (BF + 4 * mi, BF + 4 * mi + 3, 256 * mi))
    for r in range(ACC, ACC + 32):
        a("v_mov_b32 v%d, 0" % r)

    def issueA(i):
        G, ii = i >> 2, i & 3
        base = 34 + G
        r = AR + 4 * (i & 3)
        o = 64 * (3 - ii)
        a("ds_read2_b32 v[%d:%d], v%d offset0:%d offset1:%d" % (r, r + 1, base, o, o + 1))
        a("ds_read2_b32 v[%d:%d], v%d offset0:%d offset1:%d" % (r + 2, r + 3, base, o + 2, o + 3))
    for i in range(3):
        issueA(i)
    for i in range(16):
        nxt = min(15, i + 2) - i
        a("s_waitcnt lgkmcnt(%d)" % (2 * nxt))
        r = AR + 4 * (i & 3)
        first = True
        for t in range(8):
            if i <= 2 * t + 1:
                mi = 2 * t - i + 1
                a("v_mfma_f32_16x16x32_bf16 v[%d:%d], v[%d:%d], v[%d:%d], v[%d:%d]" % (
                    ACC + 4 * t, ACC + 4 * t + 3, r, r + 3, BF + 4 * mi, BF + 4 * mi + 3, ACC + 4 * t, ACC + 4 * t + 3))
                if first and i + 3 < 16:
                    issueA(i + 3)
                    first = False
    stamp(a, 2)
    a("v_lshlrev_b32 v5, 13, v2")
    a("v_lshl_add_u32 v5, v1, 4, v5")
    for t in range(8):
        a("ds_write_b128 v5, v[%d:%d] offset:%d" % (ACC + 4 * t, ACC + 4 * t + 3, RED + 1024 * t))
    a("v_lshlrev_b32 v5, 11, v2")
    a("v_lshl_add_u32 v5, v1, 4, v5")
    a("v_lshlrev_b32 v6, 9, v2")
    a("v_lshl_add_u32 v6, v3, 4, v6")
    a("v_lshl_add_u32 v6, v4, 2, v6")
    a("v_lshlrev_b32 v6, 1, v6")
    a("s_waitcnt lgkmcnt(0)")
    a("s_barrier")
    for tt in range(2):
        for w2 in range(4):
            r = 72 + 16 * tt + 4 * w2
            a("ds_read_b128 v[%d:%d], v5 offset:%d" % (r, r + 3, RED + w2 * 8192 + tt * 1024))
        a("ds_read_b64 v[%d:%d], v6 offset:%d" % (104 + 2 * tt, 105 + 2 * tt, U + 512 * tt))
    a("v_lshlrev_b32 v9, 16, v9")
    a("s_add_u32 s3, s3, %d" % AT_OFF)
    a("v_add_u32 v6, s3, v6")
    for tt in range(2):
        a("s_waitcnt lgkmcnt(%d)" % (5 if tt == 0 else 0))
        b = 72 + 16 * tt
        for r in range(4):
            a("v_add_f32 v%d, v%d, v%d" % (b + r, b + r, b + 4 + r))
            a("v_add_f32 v%d, v%d, v%d" % (b + 8 + r, b + 8 + r, b + 12 + r))
        for r in range(4):
            a("v_add_f32 v%d, v%d, v%d" % (b + r, b + r, b + 8 + r))
        a("v_cvt_pk_bf16_f32 v%d, v%d, v%d" % (b + 4, b, b + 1))
        a("v_cvt_pk_bf16_f32 v%d, v%d, v%d" % (b + 5, b + 2, b + 3))
        x = 104 + 2 * tt
        a("v_lshlrev_b32 v%d, 16, v%d" % (b + 8, x))
        a("v_and_b32 v%d, 0xffff0000, v%d" % (b + 9, x))
        a("v_lshlrev_b32 v%d, 16, v%d" % (b + 10, x + 1))
        a("v_and_b32 v%d, 0xffff0000, v%d" % (b + 11, x + 1))
        for r in range(4):
            a("v_mul_f32 v%d, v9, v%d" % (b + 8 + r, b + 8 + r))
        a("v_cvt_pk_bf16_f32 v%d, v%d, v%d" % (b + 6, b + 8, b + 9))
        a("v_cvt_pk_bf16_f32 v%d, v%d, v%d" % (b + 7, b + 10, b + 11))
        a("v_lshlrev_b32 v%d, 16, v%d" % (b + 0, b + 4))
        a("v_and_b32 v%d, 0xffff0000, v%d" % (b + 1, b + 4))
        a("v_lshlrev_b32 v%d, 16, v%d" % (b + 2, b + 5))
        a("v_and_b32 v%d, 0xffff0000, v%d" % (b + 3, b + 5))
        a("v_lshlrev_b32 v%d, 16, v%d" % (b + 8, b + 6))
        a("v_and_b32 v%d, 0xffff0000, v%d" % (b + 9, b + 6))
        a("v_lshlrev_b32 v%d, 16, v%d" % (b + 10, b + 7))
        a("v_and_b32 v%d, 0xffff0000, v%d" % (b + 11, b + 7))
        for r in range(4):
            a("v_add_f32 v%d, v%d, v%d" % (b + r, b + r, b + 8 + r))
        a("v_cvt_pk_bf16_f32 v%d, v%d, v%d" % (b + 4, b, b + 1))
        a("v_cvt_pk_bf16_f32 v%d, v%d, v%d" % (b + 5, b + 2, b + 3))
        a("global_store_dwordx2 v6, v[%d:%d], s[6:7] offset:%d" % (b + 4, b + 5, 512 * tt))
    dump(a, "conv", 3, 1)
    a("s_endpgm")


def gen_gemm1(a):
    NST = 5
    STG = 16384
    NCH = 16
    a("; ---------------- GEMM1 ----------------")
    stamp(a, 0)
    a("s_load_dwordx2 s[4:5], s[0:1], 80")
    a("s_load_dwordx2 s[6:7], s[0:1], 112")
    a("s_and_b32 s9, s2, 7")
    a("s_lshr_b32 s8, s2, 4")
    a("s_bfe_u32 s10, s2, 0x10003")
    a("s_lshl_b32 s9, s9, 1")
    a("s_add_u32 s9, s9, s10")
    if os.environ.get("SAMETILE") == "1":
        a("s_mov_b32 s8, 0")
        a("s_mov_b32 s9, 0")
    if os.environ.get("SAMETILE") == "2":
        a("s_mov_b32 s8, 0")
    if os.environ.get("SAMETILE") == "3":
        a("s_mov_b32 s9, 0")
    a("s_lshl_b32 s10, s8, 8")
    a("s_lshl_b32 s11, s9, 17")
    a("v_and_b32 v1, 63, v0")
    a("v_lshrrev_b32 v2, 6, v0")
    a("v_readfirstlane_b32 s12, v2")
    a("v_lshrrev_b32 v3, 2, v1")
    a("v_lshl_add_u32 v3, v2, 5, v3")
    a("v_lshrrev_b32 v4, 4, v1")
    a("v_xor_b32 v4, v4, v1")
    a("v_and_b32 v4, 3, v4")
    a("v_lshlrev_b32 v3, 10, v3")
    a("v_lshl_add_u32 v3, v4, 4, v3")
    a("v_add_u32 v8, s11, v3")
    a("v_add_u32 v9, 0x4000, v8")
    a("v_lshrrev_b32 v4, 4, v1")
    a("v_lshlrev_b32 v5, 2, v4")
    a("v_xor_b32 v5, v5, v1")
    a("v_and_b32 v5, 15, v5")
    a("v_lshl_add_u32 v4, v2, 3, v4")
    a("v_mul_u32_u24 v4, 2752, v4")
    a("v_lshl_add_u32 v4, v5, 4, v4")
    a("v_add_u32 v10, s10, v4")
    a("v_add_u32 v11, %d, v10" % (4 * 2752))
    a("v_and_b32 v4, 31, v1")
    a("v_lshrrev_b32 v5, 5, v1")
    a("v_and_b32 v6, 1, v2")
    a("v_lshl_add_u32 v4, v6, 6, v4")
    a("v_lshrrev_b32 v6, 2, v4")
    a("v_and_b32 v6, 3, v6")
    for s_ in range(2):
        a("v_add_u32 v7, %d, v5" % (2 * s_))
        a("v_xor_b32 v7, v7, v6")
        a("v_lshlrev_b32 v7, 4, v7")
        a("v_lshl_add_u32 v%d, v4, 6, v7" % (12 + s_))
    a("v_and_b32 v4, 15, v1")
    a("v_lshrrev_b32 v5, 4, v1")
    a("v_lshrrev_b32 v6, 1, v5")
    a("v_lshrrev_b32 v7, 2, v4")
    a("v_lshl_add_u32 v16, v6, 3, v7")
    a("v_lshlrev_b32 v16, 8, v16")
    a("v_and_b32 v6, 1, v4")
    a("v_lshl_add_u32 v16, v6, 3, v16")
    a("v_add_u32 v16, 8192, v16")
    a("v_and_b32 v5, 1, v5")
    a("v_lshlrev_b32 v5, 1, v5")
    a("v_bfe_u32 v6, v4, 1, 1")
    a("v_add_u32 v5, v5, v6")
    a("v_lshrrev_b32 v6, 1, v2")
    a("v_lshl_add_u32 v5, v6, 3, v5")
    a("v_lshlrev_b32 v7, 2, v7")
    for ft in range(2):
        a("v_add_u32 v6, %d, v5" % (4 * ft))
        a("v_xor_b32 v6, v6, v7")
        a("v_lshl_add_u32 v%d, v6, 4, v16" % (14 + ft))
    for r in range(4):
        a("v_add_u32 v%d, %d, v%d" % (16 + r, 3 * STG, 12 + r))
    a("s_waitcnt lgkmcnt(0)")
    a("s_mov_b32 s16, s6")
    a("s_and_b32 s17, s7, 0xffff")
    a("s_mov_b32 s18, %d" % (2 * MB))
    a("s_mov_b32 s19, 0x00020000")
    a("s_mov_b32 s20, s4")
    a("s_and_b32 s21, s5, 0xffff")
    a("s_mov_b32 s22, %d" % (512 * 2752))
    a("s_mov_b32 s23, 0x00020000")
    a("s_lshl_b32 s13, s12, 11")
    ACC = 32
    FR = 96

    def dma(c):
        st = (c % NST) * STG
        a("s_movk_i32 s25, %d" % (64 * c))
        a("s_mov_b32 s26, %d" % (88064 * c))
        for jj in range(2):
            a("s_add_u32 s24, s13, %d" % (st + 1024 * jj))
            a("s_mov_b32 m0, s24")
            a("buffer_load_dwordx4 v%d, s[16:19], s25 offen lds" % (8 + jj))
        for jj in range(2):
            a("s_add_u32 s24, s13, %d" % (st + 8192 + 1024 * jj))
            a("s_mov_b32 m0, s24")
            a("buffer_load_dwordx4 v%d, s[20:23], s26 offen lds" % (10 + jj))
    for c in range(NST - 1):
        dma(c)
    for r in range(ACC, ACC + 64):
        a("v_mov_b32 v%d, 0" % r)

    def reads(c):
        stn = c % NST
        hi = stn >= 3
        st = (stn - 3 if hi else stn) * STG
        ab = 16 if hi else 12
        fb = FR + 32 * (c & 1)
        out = []
        for s_ in range(2):
            b = fb + 16 * s_
            for lt in range(2):
                out.append("ds_read_b128 v[%d:%d], v%d offset:%d" % (b + 4 * lt, b + 4 * lt + 3, ab + s_, st + 2048 * lt))
            for ft in range(2):
                for jh in range(2):
                    r = b + 8 + 4 * ft + 2 * jh
                    out.append("ds_read_b64_tr_b16 v[%d:%d], v%d offset:%d" % (r, r + 1, ab + 2 + ft, st + s_ * 4096 + jh * 1024))
        return out

    def mfmas(c):
        fb = FR + 32 * (c & 1)
        out = []
        for s_ in range(2):
            b = fb + 16 * s_
            for ft in range(2):
                for lt in range(2):
                    acc = ACC + 16 * (2 * lt + ft)
                    out.append("v_mfma_f32_32x32x16_bf16 v[%d:%d], v[%d:%d], v[%d:%d], v[%d:%d]" % (
                        acc, acc + 15, b + 8 + 4 * ft, b + 11 + 4 * ft, b + 4 * lt, b + 4 * lt + 3, acc, acc + 15))
        return out
    for c in range(NCH + 1):
        if c < NCH:
            rem = min(NCH - 1, c + NST - 2) - c
            a("s_waitcnt vmcnt(%d) lgkmcnt(0)" % (4 * rem))
            a("s_barrier")
            if c in (0, 1, 8):
                stamp(a, {0: 1, 1: 2, 8: 3}[c])
            R = reads(c)
        else:
            a("s_waitcnt lgkmcnt(0)")
            R = []
        M = mfmas(c - 1) if c > 0 else []
        mi = 0
        ri = 0
        dma_done = not (c >= 1 and c + NST - 2 < NCH) if False else False
        while mi < len(M) or ri < len(R):
            if mi < len(M):
                a(M[mi])
                mi += 1
            for _ in range(3):
                if ri < len(R):
                    a(R[ri])
                    ri += 1
            if not dma_done and (mi >= 2 or mi >= len(M)):
                dma_done = True
                if c + NST - 1 < NCH:
                    dma(c + NST - 1)
    stamp(a, 4)
    a("v_and_b32 v4, 31, v1")
    a("v_and_b32 v6, 1, v2")
    a("v_lshl_add_u32 v4, v6, 6, v4")
    a("s_lshl_b32 s24, s9, 7")
    a("v_add_u32 v4, s24, v4")
    a("v_mul_u32_u24 v4, 2752, v4")
    a("v_lshrrev_b32 v5, 5, v1")
    a("v_lshl_add_u32 v4, v5, 4, v4")
    a("v_lshrrev_b32 v6, 1, v2")
    a("v_lshl_add_u32 v4, v6, 7, v4")
    a("s_add_u32 s24, s10, %d" % H_OFF)
    a("v_add_u32 v4, s24, v4")
    a("v_add_u32 v5, %d, v4" % (32 * 2752))
    a("s_lshl_b32 s25, s8, 2")
    a("s_and_b32 s26, s12, 2")
    a("s_add_u32 s25, s25, s26")
    for ft in range(2):
        a("s_add_u32 s26, s25, %d" % ft)
        a("s_cmp_ge_u32 s26, 43")
        a("s_cbranch_scc1 L_g1_done")
        for lt in range(2):
            acc = ACC + 16 * (2 * lt + ft)
            for r in range(16):
                a("v_max_f32 v%d, 0, v%d" % (acc + r, acc + r))
            o = FR + 8 * (2 * ft + lt)
            for rg in range(4):
                r = acc + 4 * rg
                a("v_cvt_pk_bf16_f32 v%d, v%d, v%d" % (o + 2 * rg, r, r + 1))
                a("v_cvt_pk_bf16_f32 v%d, v%d, v%d" % (o + 2 * rg + 1, r + 2, r + 3))
            for k in range(2):
                a("v_permlane32_swap_b32 v%d, v%d" % (o + 4 * k, o + 4 * k + 2))
                a("v_permlane32_swap_b32 v%d, v%d" % (o + 4 * k + 1, o + 4 * k + 3))
            for k in range(2):
                a("global_store_dwordx4 v%d, v[%d:%d], s[6:7] offset:%d" % (4 + lt, o + 4 * k, o + 4 * k + 3, 64 * ft + 32 * k))
    a.label("L_g1_done")
    dump(a, "g1", 5, 0)
    a("s_endpgm")


def gen_k2(a):
    a.raw(".p2align 8")
    a.raw(".type mid_kernel,@function")
    a.label("mid_kernel")
    a("s_cmp_ge_u32 s2, %d" % (176 if os.environ.get("NOCONV") else 688))
    a("s_cbranch_scc1 L_k2_exit")
    a("s_cmp_ge_u32 s2, 176")
    a("s_cbranch_scc1 L_k2_conv")
    gen_gemm1(a)
    a.label("L_k2_conv")
    a.flush_hazards(4)
    a("s_sub_u32 s28, s2, 176")
    gen_conv(a)
    a.label("L_k2_exit")
    a("s_endpgm")


def gen_gemm2(a):
    NST = 6
    STG = 16384
    NCH = 22
    a("; ---------------- GEMM2 ----------------")
    stamp(a, 0)
    a("s_load_dwordx2 s[4:5], s[0:1], 88")
    a("s_load_dwordx2 s[6:7], s[0:1], 112")
    a("s_load_dwordx2 s[28:29], s[0:1], 0")
    a("s_load_dwordx2 s[30:31], s[0:1], 96")
    a("s_and_b32 s9, s2, 7")
    a("s_lshr_b32 s8, s2, 5")
    a("s_bfe_u32 s10, s2, 0x20003")
    a("s_lshl_b32 s9, s9, 2")
    a("s_add_u32 s9, s9, s10")
    a("s_lshl_b32 s10, s8, 7")
    a("s_mul_i32 s11, s9, %d" % (64 * 2752))
    a("v_and_b32 v1, 63, v0")
    a("v_lshrrev_b32 v2, 6, v0")
    a("v_readfirstlane_b32 s12, v2")
    for jj in range(2):
        a("v_lshrrev_b32 v4, 3, v1")
        a("v_lshl_add_u32 v4, v2, 4, v4")
        a("v_add_u32 v4, %d, v4" % (8 * jj))
        a("v_and_b32 v5, 7, v1")
        a("v_lshrrev_b32 v6, 1, v4")
        a("v_and_b32 v6, 7, v6")
        a("v_xor_b32 v6, v6, v5")
        a("v_mul_u32_u24 v7, 2752, v4")
        a("v_lshl_add_u32 v7, v6, 4, v7")
        a("v_add_u32 v%d, s11, v7" % (8 + jj))
        a("v_lshlrev_b32 v6, 1, v4")
        a("v_and_b32 v6, 4, v6")
        a("v_xor_b32 v6, v6, v5")
        a("v_lshlrev_b32 v7, 10, v4")
        a("v_lshl_add_u32 v7, v6, 4, v7")
        a("v_add_u32 v%d, s10, v7" % (10 + jj))
    a("v_and_b32 v4, 31, v1")
    a("v_lshrrev_b32 v5, 5, v1")
    a("v_and_b32 v6, 1, v2")
    a("v_lshl_add_u32 v4, v6, 5, v4")
    a("v_lshrrev_b32 v6, 1, v4")
    a("v_and_b32 v6, 7, v6")
    for s in range(4):
        a("v_add_u32 v7, %d, v5" % (2 * s))
        a("v_xor_b32 v7, v7, v6")
        a("v_lshlrev_b32 v7, 4, v7")
        a("v_lshl_add_u32 v%d, v4, 7, v7" % (12 + s))
        a("v_add_u32 v%d, %d, v%d" % (16 + s, 3 * STG, 12 + s))
    a("v_and_b32 v4, 15, v1")
    a("v_lshrrev_b32 v5, 4, v1")
    a("v_lshrrev_b32 v6, 1, v5")
    a("v_lshrrev_b32 v7, 2, v4")
    a("v_lshl_add_u32 v7, v6, 3, v7")
    a("v_lshlrev_b32 v7, 7, v7")
    a("v_and_b32 v6, 1, v4")
    a("v_lshl_add_u32 v7, v6, 3, v7")
    a("v_add_u32 v7, 8192, v7")
    a("v_and_b32 v5, 1, v5")
    a("v_lshlrev_b32 v5, 1, v5")
    a("v_bfe_u32 v6, v4, 1, 1")
    a("v_add_u32 v5, v5, v6")
    a("v_lshrrev_b32 v6, 1, v2")
    a("v_lshl_add_u32 v5, v6, 2, v5")
    a("v_lshrrev_b32 v6, 1, v4")
    a("v_and_b32 v6, 4, v6")
    a("v_xor_b32 v5, v5, v6")
    a("v_lshl_add_u32 v20, v5, 4, v7")
    a("v_add_u32 v21, %d, v20" % (3 * STG))
    a("s_waitcnt lgkmcnt(0)")
    a("s_add_u32 s16, s6, %d" % H_OFF)
    a("s_addc_u32 s17, s7, 0")
    a("s_and_b32 s17, s17, 0xffff")
    a("s_mov_b32 s18, %d" % H_BYTES)
    a("s_mov_b32 s19, 0x00020000")
    a("s_mov_b32 s20, s4")
    a("s_and_b32 s21, s5, 0xffff")
    a("s_mov_b32 s22, %d" % (1376 * 1024))
    a("s_mov_b32 s23, 0x00020000")
    a("s_lshl_b32 s13, s12, 11")
    ACC = 32
    for r in range(ACC, ACC + 16):
        a("v_mov_b32 v%d, 0" % r)

    def dma(c):
        st = (c % NST) * STG
        a("s_movk_i32 s25, %d" % (128 * c))
        a("s_mov_b32 s26, %d" % (65536 * c))
        for jj in range(2):
            a("s_add_u32 s24, s13, %d" % (st + 1024 * jj))
            a("s_mov_b32 m0, s24")
            a("buffer_load_dwordx4 v%d, s[16:19], s25 offen lds" % (8 + jj))
        for jj in range(2):
            a("s_add_u32 s24, s13, %d" % (st + 8192 + 1024 * jj))
            a("s_mov_b32 m0, s24")
            a("buffer_load_dwordx4 v%d, s[20:23], s26 offen lds" % (10 + jj))
    for c in range(NST - 1):
        dma(c)
    a("v_and_b32 v4, 31, v1")
    a("v_and_b32 v6, 1, v2")
    a("v_lshl_add_u32 v4, v6, 5, v4")
    a("s_lshl_b32 s24, s9, 6")
    a("v_add_u32 v4, s24, v4")
    a("v_lshrrev_b32 v5, 5, v1")
    a("v_lshrrev_b32 v6, 1, v2")
    a("v_lshlrev_b32 v6, 5, v6")
    a("v_lshl_add_u32 v6, v5, 2, v6")
    a("s_lshl_b32 s24, s8, 6")
    a("v_add_u32 v6, s24, v6")
    a("v_lshlrev_b32 v22, 10, v4")
    a("v_lshl_add_u32 v22, v6, 1, v22")
    a("v_lshlrev_b32 v23, 12, v6")
    a("v_lshl_add_u32 v23, v4, 1, v23")
    a("v_add_u32 v23, %d, v23" % AT_OFF)
    XR = 48
    ATR = 56
    for rg in range(4):
        a("global_load_dwordx2 v[%d:%d], v22, s[28:29] offset:%d" % (XR + 2 * rg, XR + 2 * rg + 1, 16 * rg))
    for rg in range(4):
        if rg:
            a("v_add_u32 v23, %d, v23" % (8 * 4096))
        for r in range(4):
            if r < 1:
                a("global_load_ushort v%d, v23, s[6:7]" % (ATR + 4 * rg + r))
            else:
                pass
        a("v_add_u32 v24, 4096, v23")
        a("global_load_ushort v%d, v24, s[6:7]" % (ATR + 4 * rg + 1))
        a("v_add_u32 v24, 8192, v23")
        a("global_load_ushort v%d, v24, s[6:7]" % (ATR + 4 * rg + 2))
        a("v_add_u32 v24, 12288, v23")
        a("global_load_ushort v%d, v24, s[6:7]" % (ATR + 4 * rg + 3))
    NEXTRA = 20
    FR = 80
    for c in range(NCH):
        rem = min(NCH - 1, c + NST - 2) - c
        cnt = 4 * rem
        if c < NST - 1:
            cnt += NEXTRA
        cnt = min(cnt, 63)
        a("s_waitcnt vmcnt(%d)" % cnt)
        a("s_barrier")
        if c in (0, 1, 11):
            stamp(a, {0: 1, 1: 2, 11: 3}[c])
        stn = c % NST
        hi = stn >= 3
        st = (stn - 3 if hi else stn) * STG
        for s in range(4):
            b = FR + 8 * s
            a("ds_read_b128 v[%d:%d], v%d offset:%d" % (b, b + 3, (16 if hi else 12) + s, st))
            for jh in range(2):
                r = b + 4 + 2 * jh
                a("ds_read_b64_tr_b16 v[%d:%d], v%d offset:%d" % (r, r + 1, 21 if hi else 20, st + s * 2048 + jh * 512))
        if c + NST - 1 < NCH:
            dma(c + NST - 1)
        for s in range(4):
            b = FR + 8 * s
            a("s_waitcnt lgkmcnt(%d)" % ((3 - s) * 3))
            a("v_mfma_f32_32x32x16_bf16 v[%d:%d], v[%d:%d], v[%d:%d], v[%d:%d]" % (
                ACC, ACC + 15, b + 4, b + 7, b, b + 3, ACC, ACC + 15))
    stamp(a, 4)
    T = 112
    for rg in range(4):
        r = ACC + 4 * rg
        a("v_cvt_pk_bf16_f32 v%d, v%d, v%d" % (T, r, r + 1))
        a("v_cvt_pk_bf16_f32 v%d, v%d, v%d" % (T + 1, r + 2, r + 3))
        x = XR + 2 * rg
        a("v_lshlrev_b32 v%d, 16, v%d" % (T + 2, x))
        a("v_and_b32 v%d, 0xffff0000, v%d" % (T + 3, x))
        a("v_lshlrev_b32 v%d, 16, v%d" % (T + 4, x + 1))
        a("v_and_b32 v%d, 0xffff0000, v%d" % (T + 5, x + 1))
        for k in range(4):
            a("v_lshlrev_b32 v%d, 16, v%d" % (ATR + 4 * rg + k, ATR + 4 * rg + k))
        for k in range(4):
            a("v_add_f32 v%d, v%d, v%d" % (T + 2 + k, T + 2 + k, ATR + 4 * rg + k))
        a("v_cvt_pk_bf16_f32 v%d, v%d, v%d" % (T + 6, T + 2, T + 3))
        a("v_cvt_pk_bf16_f32 v%d, v%d, v%d" % (T + 7, T + 4, T + 5))
        a("v_lshlrev_b32 v%d, 16, v%d" % (T + 2, T + 6))
        a("v_and_b32 v%d, 0xffff0000, v%d" % (T + 3, T + 6))
        a("v_lshlrev_b32 v%d, 16, v%d" % (T + 4, T + 7))
        a("v_and_b32 v%d, 0xffff0000, v%d" % (T + 5, T + 7))
        a("v_lshlrev_b32 v%d, 16, v%d" % (T + 8, T))
        a("v_and_b32 v%d, 0xffff0000, v%d" % (T + 9, T))
        a("v_lshlrev_b32 v%d, 16, v%d" % (T + 10, T + 1))
        a("v_and_b32 v%d, 0xffff0000, v%d" % (T + 11, T + 1))
        for k in range(4):
            a("v_add_f32 v%d, v%d, v%d" % (T + 2 + k, T + 2 + k, T + 8 + k))
        o = 124 + 2 * rg
        a("v_cvt_pk_bf16_f32 v%d, v%d, v%d" % (o, T + 2, T + 3))
        a("v_cvt_pk_bf16_f32 v%d, v%d, v%d" % (o + 1, T + 4, T + 5))
        a("global_store_dwordx2 v22, v[%d:%d], s[30:31] offset:%d" % (o, o + 1, 16 * rg))
    dump(a, "g2", 5, 0)
    a("s_endpgm")


def gen_k3(a):
    a.raw(".p2align 8")
    a.raw(".type fin_kernel,@function")
    a.label("fin_kernel")
    a("s_cmp_ge_u32 s2, 256")
    a("s_cbranch_scc1 L_k3_exit")
    gen_gemm2(a)
    a.label("L_k3_exit")
    a("s_endpgm")


def desc(name, vgpr, sgpr=64 if DEBUG else 40):
    return """.amdhsa_kernel %s
  .amdhsa_next_free_vgpr %d
  .amdhsa_next_free_sgpr %d
  .amdhsa_accum_offset %d
  .amdhsa_group_segment_fixed_size 0
  .amdhsa_kernarg_size 120
  .amdhsa_user_sgpr_count 2
  .amdhsa_user_sgpr_kernarg_segment_ptr 1
  .amdhsa_system_sgpr_workgroup_id_x 1
.end_amdhsa_kernel
""" % (name, vgpr, sgpr, (vgpr + 3) // 4 * 4)


def main():
    ref = open(os.path.join(os.path.dirname(os.path.abspath(__file__)), "..", "cdna_kernels", NAME + ".s.ref")).read()
    head = []
    for line in ref.split("\n"):
        if line.startswith("; @launch") or line.startswith("; Override") or line.startswith("; grid="):
            continue
        if line.startswith(";"):
            head.append(line)
        else:
            break
    out = "\n".join(head) + "\n"
    out += "; @launch kernel=prep_kernel grid=(640,1,1) block=(256,1,1) lds=17408\n"
    out += "; @launch kernel=mid_kernel grid=(688,1,1) block=(256,1,1) lds=81920\n"
    out += "; @launch kernel=fin_kernel grid=(256,1,1) block=(256,1,1) lds=98304\n"
    out += '.amdgcn_target "amdgcn-amd-amdhsa--gfx950"\n.text\n'
    out += ".globl prep_kernel\n.globl mid_kernel\n.globl fin_kernel\n"
    for g in (gen_k1, gen_k2, gen_k3):
        a = Asm()
        g(a)
        out += a.text()
    out += '.section .rodata,"a"\n.p2align 6\n'
    out += desc("prep_kernel", 120)
    out += ".p2align 6\n" + desc("mid_kernel", 160)
    out += ".p2align 6\n" + desc("fin_kernel", 132)
    path = os.path.join(os.path.dirname(os.path.abspath(__file__)), "..", "cdna_kernels", NAME + ".s")
    if DEBUG:
        path = os.path.join(os.path.dirname(os.path.abspath(__file__)), "dbg.s")
    open(path, "w").write(out)
    print("wrote", path, len(out))


if __name__ == "__main__":
    main()
```

```python
import sys
import os
sys.path.insert(0, os.path.dirname(os.path.abspath(__file__)))
from asmlib import Asm

NAME = "parallel_sum__ssm_conv_s4__dense_activation_relu__prompt"
MB = 1 << 20
XN_OFF = 0
XNT_OFF = 2 * MB
KR_OFF = 4 * MB
KR_PITCH = 4096
AT_OFF = 9 * MB
H_OFF = 12 * MB
H_BYTES = 2048 * 2752

LOG2E = "0x3fb8aa3b"
INV2PI = "0x3e22f983"


DEBUG = int(os.environ.get("DBG", "0"))
DBGWG = {}
for kv in os.environ.get("DBGWG", "").split(","):
    if kv:
        k, v = kv.split("=")
        DBGWG[k] = int(v)


LAUNCH = {"kgen": 0, "ln": 0, "conv": 1, "g1": 1, "g2": 2}


def stamp(a, idx):
    if DEBUG:
        if idx == 0:
            a("s_memrealtime s[60:61]")
        a("s_memtime s[%d:%d]" % (44 + 2 * idx, 45 + 2 * idx))


def dump(a, tag, n, slot):
    if not DEBUG or tag not in DBGWG:
        return
    stamp(a, n)
    a("s_load_dwordx2 s[42:43], s[0:1], 112")
    a("s_memrealtime s[62:63]")
    a("s_waitcnt lgkmcnt(0)")
    a("s_lshl_b32 s40, s2, 3")
    a("s_add_u32 s40, s40, %d" % (64 * MB + 65536 * LAUNCH[tag]))
    a("v_mov_b32 v2, s40")
    a("v_mov_b32 v4, s60")
    a("v_mov_b32 v5, s62")
    a("global_store_dwordx2 v2, v[4:5], s[42:43]")
    a("s_cmp_lg_u32 s2, %d" % DBGWG[tag])
    a("s_cbranch_scc1 L_dbg_%s" % tag)
    a("v_cmp_eq_u32 vcc, 0, v0")
    a("s_and_saveexec_b64 s[40:41], vcc")
    a("s_cbranch_execz L_dbg_%s" % tag)
    a("s_load_dwordx2 s[42:43], s[0:1], 104")
    a("s_memrealtime s[40:41]")
    a("s_waitcnt lgkmcnt(0)")
    a("v_mov_b32 v2, %d" % (slot * 64))
    for i in range(n + 1):
        a("v_mov_b32 v3, s%d" % (44 + 2 * i))
        a("global_store_dword v2, v3, s[42:43] offset:%d" % (4 * i))
    a("v_mov_b32 v3, s40")
    a("global_store_dword v2, v3, s[42:43] offset:60")
    a.label("L_dbg_%s" % tag)


def fhex(x):
    import struct
    return "0x%08x" % struct.unpack("<I", struct.pack("<f", x))[0]


def gen_kgen(a):
    DP = "row_mask:0xf bank_mask:0xf"
    TAB = 12288
    a("; ---------------- K-gen ----------------")
    stamp(a, 0)
    a("s_load_dwordx8 s[8:15], s[0:1], 8")
    a("s_load_dwordx4 s[16:19], s[0:1], 40")
    a("s_load_dwordx2 s[20:21], s[0:1], 56")
    a("s_load_dwordx2 s[22:23], s[0:1], 112")
    a("v_and_b32 v1, 63, v0")
    a("v_lshrrev_b32 v2, 6, v0")
    a("v_and_b32 v3, 15, v1")
    a("v_lshrrev_b32 v4, 4, v1")
    a("s_lshl_b32 s3, s28, 8")
    a("v_lshlrev_b32 v5, 6, v2")
    a("v_lshl_add_u32 v5, v4, 4, v5")
    a("v_and_b32 v6, 7, v3")
    a("v_lshl_add_u32 v5, v6, 1, v5")
    a("v_add_u32 v5, s3, v5")
    a("s_lshl_b32 s4, s28, 1")
    a("v_mov_b32 v6, s4")
    a("s_waitcnt lgkmcnt(0)")
    a("global_load_ushort v7, v6, s[20:21]")
    for k in range(6):
        a("global_load_ushort v%d, v5, s[%d:%d]" % (8 + k, 8 + 2 * k, 9 + 2 * k))

    def rows(i, o0, o1, o2, t0, t1):
        a("v_lshrrev_b32 v%d, 3, v%d" % (o0, i))
        a("v_and_b32 v%d, 7, v%d" % (t0, i))
        a("v_lshl_add_u32 v%d, v%d, 7, v%d" % (o0, o0, t0))
        a("v_lshrrev_b32 v%d, 2, v%d" % (o1, i))
        a("v_and_b32 v%d, 3, v%d" % (t0, i))
        a("v_lshlrev_b32 v%d, 1, v%d" % (t0, t0))
        a("v_lshl_add_u32 v%d, v%d, 7, v%d" % (o1, o1, t0))
        a("v_add_u32 v%d, 0x100, v%d" % (o1, o1))
        a("v_subrev_u32 v%d, 8, v%d" % (t0, i))
        a("v_lshrrev_b32 v%d, 1, v%d" % (t0, t0))
        a("v_and_b32 v%d, 1, v%d" % (t1, i))
        a("v_lshlrev_b32 v%d, 2, v%d" % (t1, t1))
        a("v_lshl_add_u32 v%d, v%d, 7, v%d" % (t0, t0, t1))
        a("v_add_u32 v%d, 0x200, v%d" % (t0, t0))
        a("v_cmp_gt_u32 vcc, 8, v%d" % i)
        a("v_cndmask_b32 v%d, v%d, v%d, vcc" % (o1, t0, o1))
        if o2 is not None:
            a("v_lshlrev_b32 v%d, 7, v%d" % (o2, i))
            a("v_add_u32 v%d, 0x400, v%d" % (o2, o2))
    rows(3, 32, 33, 34, 35, 36)
    a("v_lshlrev_b32 v35, 3, v3")
    for r in range(32, 36):
        a("v_cvt_f32_u32 v%d, v%d" % (r, r))
    a("v_lshrrev_b32 v20, 4, v0")
    a("v_and_b32 v21, 15, v0")
    rows(20, 60, 61, None, 22, 23)
    a("s_movk_i32 s7, 16255")
    a("s_mov_b32 s24, 0x3f7f3f7f")
    for r in (60, 61):
        a("v_lshl_add_u32 v%d, v21, 3, v%d" % (r, r))
        a("v_cvt_f32_u32 v%d, v%d" % (r, r))
        a("v_lshrrev_b32 v%d, 16, v%d" % (r, r))
        a("v_max_u32 v%d, s7, v%d" % (r, r))
        a("v_subrev_u32 v%d, s7, v%d" % (r, r))
        a("v_lshlrev_b32 v%d, 1, v%d" % (r, r))
    a("v_lshlrev_b32 v62, 1, v0")
    a("v_add_u32 v62, %d, v62" % (2 * 1281))
    a("v_lshlrev_b32 v22, 3, v0")
    a("v_sub_u32 v22, 2047, v22")
    for jj in range(4):
        a("v_subrev_u32 v23, %d, v22" % (2 * jj))
        a("v_subrev_u32 v24, %d, v22" % (2 * jj + 1))
        a("v_cvt_f32_u32 v23, v23")
        a("v_cvt_f32_u32 v24, v24")
        a("v_cvt_pk_bf16_f32 v23, v23, v24")
        a("v_pk_sub_u16 v23, v23, s24 clamp")
        a("v_lshlrev_b32 v24, 1, v23")
        a("v_and_b32 v%d, 0xffff, v24" % (64 + 2 * jj))
        a("v_lshrrev_b32 v%d, 15, v23" % (65 + 2 * jj))
    for r in range(36, 48):
        a("v_mov_b32 v%d, 0" % r)
    a("s_mov_b32 s5, %s" % LOG2E)
    a("s_mov_b32 s6, %s" % INV2PI)
    a("s_waitcnt vmcnt(6)")
    stamp(a, 1)
    a("v_lshlrev_b32 v7, 16, v7")
    a("v_mul_f32 v7, s5, v7")
    a("v_exp_f32 v7, v7")
    a("v_cvt_pk_bf16_f32 v7, v7, v7")
    a("v_lshlrev_b32 v7, 16, v7")
    a("s_waitcnt vmcnt(0)")
    for k in range(6):
        a("v_lshlrev_b32 v%d, 16, v%d" % (8 + k, 8 + k))
    for k in range(4):
        a("v_mul_f32 v%d, v7, v%d" % (8 + k, 8 + k))
    RHO, TH, CR, CI, NCI = 48, 49, 50, 51, 52
    a("v_mul_f32 v%d, s5, v8" % RHO)
    a("v_mul_f32 v%d, s6, v9" % TH)
    a("v_mul_f32 v%d, v12, v10" % CR)
    a("v_mul_f32 v%d, v12, v11" % CI)
    a("v_fma_f32 v%d, -v13, v11, v%d" % (CR, CR))
    a("v_fma_f32 v%d, v13, v10, v%d" % (CI, CI))
    a("v_xor_b32 v%d, 0x80000000, v%d" % (NCI, CI))
    stamp(a, 2)
    pend = []
    for g in range(9):
        V = []
        M = []
        if g < 8:
            bc = "row_newbcast:%d %s" % (g, DP)
            L = [35, 32, 33, 34]
            o = 80 + 20 * (g & 1)
            for X in range(4):
                V.append("v_mul_f32_dpp v%d, v%d, v%d %s" % (o + 4 * X, TH, L[X], bc))
                V.append("v_mul_f32_dpp v%d, v%d, v%d %s" % (o + 1 + 4 * X, RHO, L[X], bc))
            for X in range(4):
                V.append("v_fract_f32 v%d, v%d" % (o + 4 * X, o + 4 * X))
                V.append("v_exp_f32 v%d, v%d" % (o + 1 + 4 * X, o + 1 + 4 * X))
            for X in range(4):
                V.append("v_cos_f32 v%d, v%d" % (o + 2 + 4 * X, o + 4 * X))
                V.append("v_sin_f32 v%d, v%d" % (o + 3 + 4 * X, o + 4 * X))
            V.append("v_mul_f32 v%d, v%d, v%d" % (o + 2, o + 1, o + 2))
            V.append("v_mul_f32 v%d, v%d, v%d" % (o + 3, o + 1, o + 3))
            for X in range(1, 4):
                V.append("v_mul_f32 v%d, v%d, v%d" % (o + 2 + 4 * X, o + 1 + 4 * X, o + 2 + 4 * X))
                V.append("v_mul_f32 v%d, -v%d, v%d" % (o + 3 + 4 * X, o + 1 + 4 * X, o + 3 + 4 * X))
            V.append("v_mul_f32_dpp v%d, v%d, v%d %s" % (o + 16, CR, o + 2, bc))
            V.append("v_mul_f32_dpp v%d, v%d, v%d %s" % (o + 17, CR, o + 3, bc))
            V.append("v_fmac_f32_dpp v%d, v%d, v%d %s" % (o + 16, NCI, o + 3, bc))
            V.append("v_fmac_f32_dpp v%d, v%d, v%d %s" % (o + 17, CI, o + 2, bc))
            for T in range(3):
                X = T + 1
                acc = 36 + 4 * T
                M.append("v_mfma_f32_16x16x4_f32 v[%d:%d], v%d, v%d, v[%d:%d]" % (acc, acc + 3, o + 2 + 4 * X, o + 16, acc, acc + 3))
            for T in range(3):
                X = T + 1
                acc = 36 + 4 * T
                M.append("v_mfma_f32_16x16x4_f32 v[%d:%d], v%d, v%d, v[%d:%d]" % (acc, acc + 3, o + 3 + 4 * X, o + 17, acc, acc + 3))
        pos = [1, 8, 14, 19, 24, 30]
        k = 0
        for vi, v in enumerate(V):
            if k < len(pend) and vi == pos[k]:
                a(pend[k])
                k += 1
            a(v)
        while k < len(pend):
            a(pend[k])
            k += 1
        pend = M
    stamp(a, 3)
    a("v_mul_u32_u24 v5, 768, v2")
    a("v_lshl_add_u32 v5, v4, 6, v5")
    a("v_add_u32 v5, v5, v3")
    a("v_lshlrev_b32 v5, 2, v5")
    for T in range(3):
        for r in range(4):
            a("ds_write_b32 v5, v%d offset:%d" % (36 + 4 * T + r, (16 * T + r) * 64))
    a("v_lshlrev_b32 v5, 2, v0")
    a("s_waitcnt lgkmcnt(0)")
    a("s_barrier")
    for k in range(3):
        for w in range(4):
            a("ds_read_b32 v%d, v5 offset:%d" % (8 + 4 * k + w, (k * 256 + w * 768) * 4))
    a("s_lshl_b32 s4, s28, 12")
    a("s_add_u32 s4, s4, %d" % KR_OFF)
    a("v_lshlrev_b32 v6, 4, v0")
    a("v_add_u32 v6, s4, v6")
    for k in range(3):
        b = 8 + 4 * k
        a("s_waitcnt lgkmcnt(%d)" % (8 - 4 * k + k))
        a("v_add_f32 v%d, v%d, v%d" % (b, b, b + 1))
        a("v_add_f32 v%d, v%d, v%d" % (b + 2, b + 2, b + 3))
        a("v_add_f32 v%d, v%d, v%d" % (b, b, b + 2))
        a("v_cvt_pk_bf16_f32 v%d, v%d, v%d" % (b, b, b))
        a("ds_write_b16 v%d, v%d offset:%d" % (60 + k, b, TAB))
    a("s_waitcnt lgkmcnt(0)")
    a("s_barrier")
    stamp(a, 4)
    for jj in range(4):
        a("ds_read_u16 v%d, v%d offset:%d" % (24 + jj, 64 + 2 * jj, TAB))
        a("ds_read_u16 v%d, v%d offset:%d" % (28 + jj, 65 + 2 * jj, TAB))
    for jj in range(4):
        a("s_waitcnt lgkmcnt(%d)" % (6 - 2 * jj))
        a("v_lshl_or_b32 v%d, v%d, 16, v%d" % (24 + jj, 28 + jj, 24 + jj))
    a("global_store_dwordx4 v6, v[24:27], s[22:23]")
    dump(a, "kgen", 5, 0)
    a("s_endpgm")


def gen_ln(a):
    a("; ---------------- LN ----------------")
    stamp(a, 0)
    a("s_load_dwordx2 s[4:5], s[0:1], 0")
    a("s_load_dwordx2 s[6:7], s[0:1], 112")
    a("s_sub_u32 s3, s2, 512")
    a("s_and_b32 s8, s3, 7")
    a("s_lshr_b32 s3, s3, 3")
    a("s_lshl_b32 s8, s8, 8")
    a("s_lshl_b32 s3, s3, 4")
    a("s_add_u32 s3, s3, s8")
    a("v_and_b32 v1, 63, v0")
    a("v_lshrrev_b32 v2, 6, v0")
    a("v_lshlrev_b32 v3, 2, v2")
    a("v_add_u32 v3, s3, v3")
    a("v_lshlrev_b32 v3, 10, v3")
    a("v_lshl_add_u32 v3, v1, 4, v3")
    a("s_waitcnt lgkmcnt(0)")
    for rr in range(4):
        a("global_load_dwordx4 v[%d:%d], v3, s[4:5] offset:%d" % (8 + 4 * rr, 11 + 4 * rr, 1024 * rr))
    a("s_mov_b32 s8, %s" % fhex(1.0 / 512))
    a("s_mov_b32 s9, %s" % fhex(1e-5))
    for rr in range(4):
        a("s_waitcnt vmcnt(%d)" % (3 - rr))
        for k in range(4):
            a("v_lshlrev_b32 v%d, 16, v%d" % (32 + 8 * rr + 2 * k, 8 + 4 * rr + k))
            a("v_and_b32 v%d, 0xffff0000, v%d" % (33 + 8 * rr + 2 * k, 8 + 4 * rr + k))
    stamp(a, 1)
    for rr in range(4):
        b = 32 + 8 * rr
        a("v_add_f32 v%d, v%d, v%d" % (24 + rr, b, b + 1))
    for k in range(2, 8):
        for rr in range(4):
            a("v_add_f32 v%d, v%d, v%d" % (24 + rr, 24 + rr, 32 + 8 * rr + k))

    def wave_reduce(regs):
        for sh in ("row_shr:1", "row_shr:2", "row_shr:4", "row_shr:8"):
            for r in regs:
                a("v_add_f32_dpp v%d, v%d, v%d %s row_mask:0xf bank_mask:0xf bound_ctrl:0" % (r, r, r, sh))
        for r in regs:
            a("v_add_f32_dpp v%d, v%d, v%d row_bcast:15 row_mask:0xa bank_mask:0xf" % (r, r, r))
        for r in regs:
            a("v_add_f32_dpp v%d, v%d, v%d row_bcast:31 row_mask:0xc bank_mask:0xf" % (r, r, r))
    wave_reduce([24, 25, 26, 27])
    for rr in range(4):
        a("v_mul_f32 v%d, s8, v%d" % (24 + rr, 24 + rr))
    for rr in range(4):
        a("v_readlane_b32 s%d, v%d, 63" % (10 + rr, 24 + rr))
    for rr in range(4):
        b = 32 + 8 * rr
        a("v_subrev_f32 v%d, s%d, v%d" % (64 + rr, 10 + rr, b))
    for rr in range(4):
        a("v_mul_f32 v%d, v%d, v%d" % (28 + rr, 64 + rr, 64 + rr))
    for k in range(1, 8):
        for rr in range(4):
            a("v_subrev_f32 v%d, s%d, v%d" % (64 + rr, 10 + rr, 32 + 8 * rr + k))
        for rr in range(4):
            a("v_fmac_f32 v%d, v%d, v%d" % (28 + rr, 64 + rr, 64 + rr))
    wave_reduce([28, 29, 30, 31])
    for rr in range(4):
        a("v_mul_f32 v%d, s8, v%d" % (28 + rr, 28 + rr))
    for rr in range(4):
        a("v_cvt_pk_bf16_f32 v%d, v%d, v%d" % (28 + rr, 28 + rr, 24 + rr))
    for rr in range(4):
        a("v_and_b32 v%d, 0xffff0000, v%d" % (24 + rr, 28 + rr))
        a("v_lshlrev_b32 v%d, 16, v%d" % (28 + rr, 28 + rr))
    for rr in range(4):
        a("v_add_f32 v%d, s9, v%d" % (28 + rr, 28 + rr))
    for rr in range(4):
        a("v_cvt_pk_bf16_f32 v%d, v%d, v%d" % (28 + rr, 28 + rr, 28 + rr))
    for rr in range(4):
        a("v_lshlrev_b32 v%d, 16, v%d" % (28 + rr, 28 + rr))
    for rr in range(4):
        a("v_sqrt_f32 v%d, v%d" % (28 + rr, 28 + rr))
    for rr in range(4):
        a("v_cvt_pk_bf16_f32 v%d, v%d, v%d" % (28 + rr, 28 + rr, 28 + rr))
    for rr in range(4):
        a("v_lshlrev_b32 v%d, 16, v%d" % (28 + rr, 28 + rr))
    for rr in range(4):
        a("v_rcp_f32 v%d, v%d" % (64 + rr, 28 + rr))
    for rr in range(4):
        a("v_readlane_b32 s%d, v%d, 63" % (10 + rr, 24 + rr))
        a("v_readlane_b32 s%d, v%d, 63" % (14 + rr, 28 + rr))
        a("v_readlane_b32 s%d, v%d, 63" % (18 + rr, 64 + rr))
    stamp(a, 2)
    for rr in range(4):
        b = 32 + 8 * rr
        for k in range(4):
            x0, x1 = b + 2 * k, b + 2 * k + 1
            a("v_subrev_f32 v%d, s%d, v%d" % (x0, 10 + rr, x0))
            a("v_subrev_f32 v%d, s%d, v%d" % (x1, 10 + rr, x1))
        for k in range(4):
            x0, x1 = b + 2 * k, b + 2 * k + 1
            a("v_cvt_pk_bf16_f32 v%d, v%d, v%d" % (68 + k, x0, x1))
        for k in range(4):
            x0, x1 = b + 2 * k, b + 2 * k + 1
            a("v_lshlrev_b32 v%d, 16, v%d" % (x0, 68 + k))
            a("v_and_b32 v%d, 0xffff0000, v%d" % (x1, 68 + k))
        for k in range(8):
            a("v_mul_f32 v%d, s%d, v%d" % (72 + k, 18 + rr, b + k))
        for k in range(8):
            a("v_fma_f32 v%d, -v%d, s%d, v%d" % (b + k, 72 + k, 14 + rr, b + k))
        for k in range(8):
            a("v_fma_f32 v%d, v%d, s%d, v%d" % (72 + k, b + k, 18 + rr, 72 + k))
        for k in range(4):
            a("v_cvt_pk_bf16_f32 v%d, v%d, v%d" % (8 + 4 * rr + k, 72 + 2 * k, 73 + 2 * k))
    a("v_lshlrev_b32 v5, 2, v2")
    a("v_mul_u32_u24 v5, 1088, v5")
    a("v_lshl_add_u32 v5, v1, 4, v5")
    for rr in range(4):
        a("global_store_dwordx4 v3, v[%d:%d], s[6:7] offset:%d" % (8 + 4 * rr, 11 + 4 * rr, 1024 * rr))
        a("ds_write_b128 v5, v[%d:%d] offset:%d" % (8 + 4 * rr, 11 + 4 * rr, 1088 * rr))
    a("s_waitcnt lgkmcnt(0)")
    a("s_barrier")
    stamp(a, 3)
    a("v_and_b32 v6, 15, v1")
    a("v_lshrrev_b32 v7, 4, v1")
    a("v_lshrrev_b32 v24, 2, v6")
    a("v_mul_u32_u24 v24, 1088, v24")
    a("v_and_b32 v25, 3, v6")
    a("v_lshlrev_b32 v25, 3, v25")
    a("v_add_u32 v24, v24, v25")
    a("v_lshlrev_b32 v25, 7, v2")
    a("v_lshl_add_u32 v25, v7, 4, v25")
    a("v_lshl_add_u32 v24, v25, 1, v24")
    for pp in range(2):
        for rb in range(4):
            r = 32 + 8 * pp + 2 * rb
            a("ds_read_b64_tr_b16 v[%d:%d], v24 offset:%d" % (r, r + 1, rb * 4 * 1088 + pp * 128))
    a("v_add_u32 v25, v25, v6")
    a("v_lshlrev_b32 v25, 12, v25")
    a("s_lshl_b32 s3, s3, 1")
    a("s_add_u32 s3, s3, %d" % XNT_OFF)
    a("v_add_u32 v25, s3, v25")
    a("v_add_u32 v26, %d, v25" % (64 * 4096))
    a("s_waitcnt lgkmcnt(4)")
    a("global_store_dwordx4 v25, v[32:35], s[6:7]")
    a("global_store_dwordx4 v25, v[36:39], s[6:7] offset:16")
    a("s_waitcnt lgkmcnt(0)")
    a("global_store_dwordx4 v26, v[40:43], s[6:7]")
    a("global_store_dwordx4 v26, v[44:47], s[6:7] offset:16")
    dump(a, "ln", 4, 1)
    a("s_endpgm")


def gen_k1(a):
    a.raw(".p2align 8")
    a.raw(".type prep_kernel,@function")
    a.label("prep_kernel")
    a("s_cmp_ge_u32 s2, 726")
    a("s_cbranch_scc1 L_k1_exit")
    a("s_cmp_ge_u32 s2, 640")
    a("s_cbranch_scc1 L_k1_pf")
    a("s_cmp_ge_u32 s2, 512")
    a("s_cbranch_scc1 L_k1_ln")
    a("s_mov_b32 s28, s2")
    gen_kgen(a)
    a.label("L_k1_ln")
    a("s_setprio 3")
    gen_ln(a)
    a.label("L_k1_pf")
    a("s_load_dwordx4 s[4:7], s[0:1], 80")
    a("s_sub_u32 s3, s2, 640")
    a("s_lshl_b32 s3, s3, 14")
    a("v_lshlrev_b32 v1, 4, v0")
    a("v_add_u32 v1, s3, v1")
    a("s_waitcnt lgkmcnt(0)")
    for i in range(4):
        a("global_load_dwordx4 v[%d:%d], v1, s[4:5] offset:0" % (4+8*i, 7+8*i))
        a("global_load_dwordx4 v[%d:%d], v1, s[6:7] offset:0" % (8+8*i, 11+8*i))
        if i < 3:
            a("v_add_u32 v1, 4096, v1")
    a("s_waitcnt vmcnt(0)")
    a.label("L_k1_exit")
    a("s_endpgm")


def gen_conv(a):
    U = 512
    KC0 = 4608
    RED = 13056
    a("; ---------------- conv ----------------")
    stamp(a, 0)
    a("s_load_dwordx2 s[4:5], s[0:1], 64")
    a("s_load_dwordx2 s[6:7], s[0:1], 112")
    a("v_and_b32 v1, 63, v0")
    a("v_lshrrev_b32 v2, 6, v0")
    a("v_and_b32 v3, 15, v1")
    a("v_lshrrev_b32 v4, 4, v1")
    a("s_lshl_b32 s3, s28, 12")
    a("s_add_u32 s8, s3, %d" % XNT_OFF)
    a("s_mul_i32 s9, s28, %d" % KR_PITCH)
    a("s_add_u32 s9, s9, %d" % KR_OFF)
    a("v_lshlrev_b32 v5, 4, v0")
    a("v_add_u32 v6, s8, v5")
    a("v_add_u32 v7, s9, v5")
    a("s_lshl_b32 s10, s28, 1")
    a("v_mov_b32 v8, s10")
    a("s_waitcnt lgkmcnt(0)")
    a("v_subrev_u32 v10, 4, v5")
    a("v_max_i32 v10, 0, v10")
    a("v_add_u32 v10, s9, v10")
    a("global_load_dwordx4 v[12:15], v6, s[6:7]")
    a("global_load_dwordx4 v[16:19], v7, s[6:7]")
    a("global_load_dword v20, v10, s[6:7]")
    a("global_load_ushort v9, v8, s[4:5]")
    for r in range(28, 32):
        a("v_mov_b32 v%d, 0" % r)
    a("v_and_b32 v10, 31, v0")
    a("v_lshlrev_b32 v10, 4, v10")
    a("ds_write_b128 v10, v[28:31]")
    a("v_and_b32 v10, 15, v0")
    a("v_min_u32 v11, 14, v10")
    a("v_lshlrev_b32 v11, 2, v11")
    a("ds_write_b32 v11, v28 offset:%d" % (KC0 + 4100))
    a("v_lshlrev_b32 v10, 2, v10")
    a("v_add_u32 v10, %d, v10" % (KC0 + 4160 + 4096))
    a("v_mov_b32 v11, %d" % (KC0 + 4096))
    a("s_movk_i32 s14, 255")
    a("v_cmp_eq_u32 vcc, s14, v0")
    a("v_cndmask_b32 v38, v10, v11, vcc")
    a("v_cndmask_b32 v39, 0, 1, vcc")
    a("v_lshrrev_b32 v10, 1, v4")
    a("v_and_b32 v11, 1, v4")
    a("v_sub_u32 v32, v3, v10")
    a("v_lshlrev_b32 v32, 5, v32")
    a("v_lshl_add_u32 v32, v11, 4, v32")
    a("v_lshlrev_b32 v33, 6, v2")
    a("v_sub_u32 v32, v32, v33")
    a("v_add_u32 v32, %d, v32" % (U - 256))
    a("v_and_b32 v33, 1, v3")
    a("v_lshlrev_b32 v34, 5, v2")
    a("v_lshl_add_u32 v34, v10, 4, v34")
    a("v_add_u32 v34, v34, v3")
    a("v_add_u32 v34, v34, v33")
    a("v_lshlrev_b32 v35, 3, v11")
    a("v_sub_u32 v34, v35, v34")
    a("v_add_u32 v34, %d, v34" % (2048 - 384))
    a("v_lshlrev_b32 v34, 1, v34")
    a("v_mul_u32_u24 v33, 4160, v33")
    a("v_add_u32 v34, v34, v33")
    a("v_add_u32 v34, %d, v34" % KC0)
    a("v_subrev_u32 v35, 1024, v34")
    a("v_subrev_u32 v36, 2048, v34")
    a("v_subrev_u32 v37, 3072, v34")
    a("s_waitcnt vmcnt(3)")
    a("ds_write_b128 v5, v[12:15] offset:%d" % U)
    a("s_waitcnt vmcnt(1)")
    a("ds_write_b128 v5, v[16:19] offset:%d" % (KC0 + 4160))
    a("v_cmp_eq_u32 vcc, 0, v0")
    a("v_cndmask_b32 v20, v20, 0, vcc")
    a("v_alignbit_b32 v24, v16, v20, 16")
    a("v_alignbit_b32 v25, v17, v16, 16")
    a("v_alignbit_b32 v26, v18, v17, 16")
    a("v_alignbit_b32 v27, v19, v18, 16")
    a("ds_write_b128 v5, v[24:27] offset:%d" % KC0)
    a("v_lshrrev_b32 v21, 16, v19")
    a("v_mul_u32_u24 v21, v21, v39")
    a("ds_write_b32 v38, v21")
    a("s_waitcnt vmcnt(0) lgkmcnt(0)")
    a("s_barrier")
    stamp(a, 1)
    ACC, BF, AR = 40, 72, 136
    for mi in range(16):
        a("ds_read_b128 v[%d:%d], v32 offset:%d" % (BF + 4 * mi, BF + 4 * mi + 3, 256 * mi))
    for r in range(ACC, ACC + 32):
        a("v_mov_b32 v%d, 0" % r)

    def issueA(i):
        G, ii = i >> 2, i & 3
        base = 34 + G
        r = AR + 4 * (i & 3)
        o = 64 * (3 - ii)
        a("ds_read2_b32 v[%d:%d], v%d offset0:%d offset1:%d" % (r, r + 1, base, o, o + 1))
        a("ds_read2_b32 v[%d:%d], v%d offset0:%d offset1:%d" % (r + 2, r + 3, base, o + 2, o + 3))
    for i in range(3):
        issueA(i)
    for i in range(16):
        nxt = min(15, i + 2) - i
        a("s_waitcnt lgkmcnt(%d)" % (2 * nxt))
        r = AR + 4 * (i & 3)
        first = True
        for t in range(8):
            if i <= 2 * t + 1:
                mi = 2 * t - i + 1
                a("v_mfma_f32_16x16x32_bf16 v[%d:%d], v[%d:%d], v[%d:%d], v[%d:%d]" % (
                    ACC + 4 * t, ACC + 4 * t + 3, r, r + 3, BF + 4 * mi, BF + 4 * mi + 3, ACC + 4 * t, ACC + 4 * t + 3))
                if first and i + 3 < 16:
                    issueA(i + 3)
                    first = False
    stamp(a, 2)
    a("v_lshlrev_b32 v5, 13, v2")
    a("v_lshl_add_u32 v5, v1, 4, v5")
    for t in range(8):
        a("ds_write_b128 v5, v[%d:%d] offset:%d" % (ACC + 4 * t, ACC + 4 * t + 3, RED + 1024 * t))
    a("v_lshlrev_b32 v5, 11, v2")
    a("v_lshl_add_u32 v5, v1, 4, v5")
    a("v_lshlrev_b32 v6, 9, v2")
    a("v_lshl_add_u32 v6, v3, 4, v6")
    a("v_lshl_add_u32 v6, v4, 2, v6")
    a("v_lshlrev_b32 v6, 1, v6")
    a("s_waitcnt lgkmcnt(0)")
    a("s_barrier")
    for tt in range(2):
        for w2 in range(4):
            r = 72 + 16 * tt + 4 * w2
            a("ds_read_b128 v[%d:%d], v5 offset:%d" % (r, r + 3, RED + w2 * 8192 + tt * 1024))
        a("ds_read_b64 v[%d:%d], v6 offset:%d" % (104 + 2 * tt, 105 + 2 * tt, U + 512 * tt))
    a("v_lshlrev_b32 v9, 16, v9")
    a("s_add_u32 s3, s3, %d" % AT_OFF)
    a("v_add_u32 v6, s3, v6")
    for tt in range(2):
        a("s_waitcnt lgkmcnt(%d)" % (5 if tt == 0 else 0))
        b = 72 + 16 * tt
        for r in range(4):
            a("v_add_f32 v%d, v%d, v%d" % (b + r, b + r, b + 4 + r))
            a("v_add_f32 v%d, v%d, v%d" % (b + 8 + r, b + 8 + r, b + 12 + r))
        for r in range(4):
            a("v_add_f32 v%d, v%d, v%d" % (b + r, b + r, b + 8 + r))
        a("v_cvt_pk_bf16_f32 v%d, v%d, v%d" % (b + 4, b, b + 1))
        a("v_cvt_pk_bf16_f32 v%d, v%d, v%d" % (b + 5, b + 2, b + 3))
        x = 104 + 2 * tt
        a("v_lshlrev_b32 v%d, 16, v%d" % (b + 8, x))
        a("v_and_b32 v%d, 0xffff0000, v%d" % (b + 9, x))
        a("v_lshlrev_b32 v%d, 16, v%d" % (b + 10, x + 1))
        a("v_and_b32 v%d, 0xffff0000, v%d" % (b + 11, x + 1))
        for r in range(4):
            a("v_mul_f32 v%d, v9, v%d" % (b + 8 + r, b + 8 + r))
        a("v_cvt_pk_bf16_f32 v%d, v%d, v%d" % (b + 6, b + 8, b + 9))
        a("v_cvt_pk_bf16_f32 v%d, v%d, v%d" % (b + 7, b + 10, b + 11))
        a("v_lshlrev_b32 v%d, 16, v%d" % (b + 0, b + 4))
        a("v_and_b32 v%d, 0xffff0000, v%d" % (b + 1, b + 4))
        a("v_lshlrev_b32 v%d, 16, v%d" % (b + 2, b + 5))
        a("v_and_b32 v%d, 0xffff0000, v%d" % (b + 3, b + 5))
        a("v_lshlrev_b32 v%d, 16, v%d" % (b + 8, b + 6))
        a("v_and_b32 v%d, 0xffff0000, v%d" % (b + 9, b + 6))
        a("v_lshlrev_b32 v%d, 16, v%d" % (b + 10, b + 7))
        a("v_and_b32 v%d, 0xffff0000, v%d" % (b + 11, b + 7))
        for r in range(4):
            a("v_add_f32 v%d, v%d, v%d" % (b + r, b + r, b + 8 + r))
        a("v_cvt_pk_bf16_f32 v%d, v%d, v%d" % (b + 4, b, b + 1))
        a("v_cvt_pk_bf16_f32 v%d, v%d, v%d" % (b + 5, b + 2, b + 3))
        a("global_store_dwordx2 v6, v[%d:%d], s[6:7] offset:%d" % (b + 4, b + 5, 512 * tt))
    dump(a, "conv", 3, 1)
    a("s_endpgm")


def gen_gemm1(a):
    NST = 5
    STG = 16384
    NCH = 16
    a("; ---------------- GEMM1 ----------------")
    stamp(a, 0)
    a("s_load_dwordx2 s[4:5], s[0:1], 80")
    a("s_load_dwordx2 s[6:7], s[0:1], 112")
    a("s_and_b32 s9, s2, 7")
    a("s_lshr_b32 s8, s2, 4")
    a("s_bfe_u32 s10, s2, 0x10003")
    a("s_lshl_b32 s9, s9, 1")
    a("s_add_u32 s9, s9, s10")
    if os.environ.get("SAMETILE") == "1":
        a("s_mov_b32 s8, 0")
        a("s_mov_b32 s9, 0")
    if os.environ.get("SAMETILE") == "2":
        a("s_mov_b32 s8, 0")
    if os.environ.get("SAMETILE") == "3":
        a("s_mov_b32 s9, 0")
    a("s_lshl_b32 s10, s8, 8")
    a("s_lshl_b32 s11, s9, 17")
    a("v_and_b32 v1, 63, v0")
    a("v_lshrrev_b32 v2, 6, v0")
    a("v_readfirstlane_b32 s12, v2")
    a("v_lshrrev_b32 v3, 2, v1")
    a("v_lshl_add_u32 v3, v2, 5, v3")
    a("v_lshrrev_b32 v4, 4, v1")
    a("v_xor_b32 v4, v4, v1")
    a("v_and_b32 v4, 3, v4")
    a("v_lshlrev_b32 v3, 10, v3")
    a("v_lshl_add_u32 v3, v4, 4, v3")
    a("v_add_u32 v8, s11, v3")
    a("v_add_u32 v9, 0x4000, v8")
    a("v_lshrrev_b32 v4, 4, v1")
    a("v_lshlrev_b32 v5, 2, v4")
    a("v_xor_b32 v5, v5, v1")
    a("v_and_b32 v5, 15, v5")
    a("v_lshl_add_u32 v4, v2, 3, v4")
    a("v_mul_u32_u24 v4, 2752, v4")
    a("v_lshl_add_u32 v4, v5, 4, v4")
    a("v_add_u32 v10, s10, v4")
    a("v_add_u32 v11, %d, v10" % (4 * 2752))
    a("v_and_b32 v4, 31, v1")
    a("v_lshrrev_b32 v5, 5, v1")
    a("v_and_b32 v6, 1, v2")
    a("v_lshl_add_u32 v4, v6, 6, v4")
    a("v_lshrrev_b32 v6, 2, v4")
    a("v_and_b32 v6, 3, v6")
    for s_ in range(2):
        a("v_add_u32 v7, %d, v5" % (2 * s_))
        a("v_xor_b32 v7, v7, v6")
        a("v_lshlrev_b32 v7, 4, v7")
        a("v_lshl_add_u32 v%d, v4, 6, v7" % (12 + s_))
    a("v_and_b32 v4, 15, v1")
    a("v_lshrrev_b32 v5, 4, v1")
    a("v_lshrrev_b32 v6, 1, v5")
    a("v_lshrrev_b32 v7, 2, v4")
    a("v_lshl_add_u32 v16, v6, 3, v7")
    a("v_lshlrev_b32 v16, 8, v16")
    a("v_and_b32 v6, 1, v4")
    a("v_lshl_add_u32 v16, v6, 3, v16")
    a("v_add_u32 v16, 8192, v16")
    a("v_and_b32 v5, 1, v5")
    a("v_lshlrev_b32 v5, 1, v5")
    a("v_bfe_u32 v6, v4, 1, 1")
    a("v_add_u32 v5, v5, v6")
    a("v_lshrrev_b32 v6, 1, v2")
    a("v_lshl_add_u32 v5, v6, 3, v5")
    a("v_lshlrev_b32 v7, 2, v7")
    for ft in range(2):
        a("v_add_u32 v6, %d, v5" % (4 * ft))
        a("v_xor_b32 v6, v6, v7")
        a("v_lshl_add_u32 v%d, v6, 4, v16" % (14 + ft))
    for r in range(4):
        a("v_add_u32 v%d, %d, v%d" % (16 + r, 3 * STG, 12 + r))
    a("s_waitcnt lgkmcnt(0)")
    a("s_mov_b32 s16, s6")
    a("s_and_b32 s17, s7, 0xffff")
    a("s_mov_b32 s18, %d" % (2 * MB))
    a("s_mov_b32 s19, 0x00020000")
    a("s_mov_b32 s20, s4")
    a("s_and_b32 s21, s5, 0xffff")
    a("s_mov_b32 s22, %d" % (512 * 2752))
    a("s_mov_b32 s23, 0x00020000")
    a("s_lshl_b32 s13, s12, 11")
    ACC = 32
    FR = 96

    def dma(c):
        st = (c % NST) * STG
        a("s_movk_i32 s25, %d" % (64 * c))
        a("s_mov_b32 s26, %d" % (88064 * c))
        for jj in range(2):
            a("s_add_u32 s24, s13, %d" % (st + 1024 * jj))
            a("s_mov_b32 m0, s24")
            a("buffer_load_dwordx4 v%d, s[16:19], s25 offen lds" % (8 + jj))
        for jj in range(2):
            a("s_add_u32 s24, s13, %d" % (st + 8192 + 1024 * jj))
            a("s_mov_b32 m0, s24")
            a("buffer_load_dwordx4 v%d, s[20:23], s26 offen lds" % (10 + jj))
    for c in range(NST - 1):
        dma(c)
    for r in range(ACC, ACC + 64):
        a("v_mov_b32 v%d, 0" % r)

    def reads(c):
        stn = c % NST
        hi = stn >= 3
        st = (stn - 3 if hi else stn) * STG
        ab = 16 if hi else 12
        fb = FR + 32 * (c & 1)
        out = []
        for s_ in range(2):
            b = fb + 16 * s_
            for lt in range(2):
                out.append("ds_read_b128 v[%d:%d], v%d offset:%d" % (b + 4 * lt, b + 4 * lt + 3, ab + s_, st + 2048 * lt))
            for ft in range(2):
                for jh in range(2):
                    r = b + 8 + 4 * ft + 2 * jh
                    out.append("ds_read_b64_tr_b16 v[%d:%d], v%d offset:%d" % (r, r + 1, ab + 2 + ft, st + s_ * 4096 + jh * 1024))
        return out

    def mfmas(c):
        fb = FR + 32 * (c & 1)
        out = []
        for s_ in range(2):
            b = fb + 16 * s_
            for ft in range(2):
                for lt in range(2):
                    acc = ACC + 16 * (2 * lt + ft)
                    out.append("v_mfma_f32_32x32x16_bf16 v[%d:%d], v[%d:%d], v[%d:%d], v[%d:%d]" % (
                        acc, acc + 15, b + 8 + 4 * ft, b + 11 + 4 * ft, b + 4 * lt, b + 4 * lt + 3, acc, acc + 15))
        return out
    for c in range(NCH + 1):
        if c < NCH:
            rem = min(NCH - 1, c + NST - 2) - c
            a("s_waitcnt vmcnt(%d) lgkmcnt(0)" % (4 * rem))
            a("s_barrier")
            if c in (0, 1, 8):
                stamp(a, {0: 1, 1: 2, 8: 3}[c])
            R = reads(c)
        else:
            a("s_waitcnt lgkmcnt(0)")
            R = []
        M = mfmas(c - 1) if c > 0 else []
        mi = 0
        ri = 0
        dma_done = not (c >= 1 and c + NST - 2 < NCH) if False else False
        while mi < len(M) or ri < len(R):
            if mi < len(M):
                a(M[mi])
                mi += 1
            for _ in range(3):
                if ri < len(R):
                    a(R[ri])
                    ri += 1
            if not dma_done and (mi >= 2 or mi >= len(M)):
                dma_done = True
                if c + NST - 1 < NCH:
                    dma(c + NST - 1)
    stamp(a, 4)
    a("v_and_b32 v4, 31, v1")
    a("v_and_b32 v6, 1, v2")
    a("v_lshl_add_u32 v4, v6, 6, v4")
    a("s_lshl_b32 s24, s9, 7")
    a("v_add_u32 v4, s24, v4")
    a("v_mul_u32_u24 v4, 2752, v4")
    a("v_lshrrev_b32 v5, 5, v1")
    a("v_lshl_add_u32 v4, v5, 4, v4")
    a("v_lshrrev_b32 v6, 1, v2")
    a("v_lshl_add_u32 v4, v6, 7, v4")
    a("s_add_u32 s24, s10, %d" % H_OFF)
    a("v_add_u32 v4, s24, v4")
    a("v_add_u32 v5, %d, v4" % (32 * 2752))
    a("s_lshl_b32 s25, s8, 2")
    a("s_and_b32 s26, s12, 2")
    a("s_add_u32 s25, s25, s26")
    for ft in range(2):
        a("s_add_u32 s26, s25, %d" % ft)
        a("s_cmp_ge_u32 s26, 43")
        a("s_cbranch_scc1 L_g1_done")
        for lt in range(2):
            acc = ACC + 16 * (2 * lt + ft)
            for r in range(16):
                a("v_max_f32 v%d, 0, v%d" % (acc + r, acc + r))
            o = FR + 8 * (2 * ft + lt)
            for rg in range(4):
                r = acc + 4 * rg
                a("v_cvt_pk_bf16_f32 v%d, v%d, v%d" % (o + 2 * rg, r, r + 1))
                a("v_cvt_pk_bf16_f32 v%d, v%d, v%d" % (o + 2 * rg + 1, r + 2, r + 3))
            for k in range(2):
                a("v_permlane32_swap_b32 v%d, v%d" % (o + 4 * k, o + 4 * k + 2))
                a("v_permlane32_swap_b32 v%d, v%d" % (o + 4 * k + 1, o + 4 * k + 3))
            for k in range(2):
                a("global_store_dwordx4 v%d, v[%d:%d], s[6:7] offset:%d" % (4 + lt, o + 4 * k, o + 4 * k + 3, 64 * ft + 32 * k))
    a.label("L_g1_done")
    dump(a, "g1", 5, 0)
    a("s_endpgm")


def gen_k2(a):
    a.raw(".p2align 8")
    a.raw(".type mid_kernel,@function")
    a.label("mid_kernel")
    a("s_cmp_ge_u32 s2, %d" % (176 if os.environ.get("NOCONV") else 688))
    a("s_cbranch_scc1 L_k2_exit")
    a("s_cmp_ge_u32 s2, 176")
    a("s_cbranch_scc1 L_k2_conv")
    gen_gemm1(a)
    a.label("L_k2_conv")
    a.flush_hazards(4)
    a("s_sub_u32 s28, s2, 176")
    gen_conv(a)
    a.label("L_k2_exit")
    a("s_endpgm")


def gen_gemm2(a):
    NST = 6
    STG = 16384
    NCH = 22
    a("; ---------------- GEMM2 ----------------")
    stamp(a, 0)
    a("s_load_dwordx2 s[4:5], s[0:1], 88")
    a("s_load_dwordx2 s[6:7], s[0:1], 112")
    a("s_load_dwordx2 s[28:29], s[0:1], 0")
    a("s_load_dwordx2 s[30:31], s[0:1], 96")
    a("s_and_b32 s9, s2, 7")
    a("s_lshr_b32 s8, s2, 5")
    a("s_bfe_u32 s10, s2, 0x20003")
    a("s_lshl_b32 s9, s9, 2")
    a("s_add_u32 s9, s9, s10")
    a("s_lshl_b32 s10, s8, 7")
    a("s_mul_i32 s11, s9, %d" % (64 * 2752))
    a("v_and_b32 v1, 63, v0")
    a("v_lshrrev_b32 v2, 6, v0")
    a("v_readfirstlane_b32 s12, v2")
    for jj in range(2):
        a("v_lshrrev_b32 v4, 3, v1")
        a("v_lshl_add_u32 v4, v2, 4, v4")
        a("v_add_u32 v4, %d, v4" % (8 * jj))
        a("v_and_b32 v5, 7, v1")
        a("v_lshrrev_b32 v6, 1, v4")
        a("v_and_b32 v6, 7, v6")
        a("v_xor_b32 v6, v6, v5")
        a("v_mul_u32_u24 v7, 2752, v4")
        a("v_lshl_add_u32 v7, v6, 4, v7")
        a("v_add_u32 v%d, s11, v7" % (8 + jj))
        a("v_lshlrev_b32 v6, 1, v4")
        a("v_and_b32 v6, 4, v6")
        a("v_xor_b32 v6, v6, v5")
        a("v_lshlrev_b32 v7, 10, v4")
        a("v_lshl_add_u32 v7, v6, 4, v7")
        a("v_add_u32 v%d, s10, v7" % (10 + jj))
    a("v_and_b32 v4, 31, v1")
    a("v_lshrrev_b32 v5, 5, v1")
    a("v_and_b32 v6, 1, v2")
    a("v_lshl_add_u32 v4, v6, 5, v4")
    a("v_lshrrev_b32 v6, 1, v4")
    a("v_and_b32 v6, 7, v6")
    for s in range(4):
        a("v_add_u32 v7, %d, v5" % (2 * s))
        a("v_xor_b32 v7, v7, v6")
        a("v_lshlrev_b32 v7, 4, v7")
        a("v_lshl_add_u32 v%d, v4, 7, v7" % (12 + s))
        a("v_add_u32 v%d, %d, v%d" % (16 + s, 3 * STG, 12 + s))
    a("v_and_b32 v4, 15, v1")
    a("v_lshrrev_b32 v5, 4, v1")
    a("v_lshrrev_b32 v6, 1, v5")
    a("v_lshrrev_b32 v7, 2, v4")
    a("v_lshl_add_u32 v7, v6, 3, v7")
    a("v_lshlrev_b32 v7, 7, v7")
    a("v_and_b32 v6, 1, v4")
    a("v_lshl_add_u32 v7, v6, 3, v7")
    a("v_add_u32 v7, 8192, v7")
    a("v_and_b32 v5, 1, v5")
    a("v_lshlrev_b32 v5, 1, v5")
    a("v_bfe_u32 v6, v4, 1, 1")
    a("v_add_u32 v5, v5, v6")
    a("v_lshrrev_b32 v6, 1, v2")
    a("v_lshl_add_u32 v5, v6, 2, v5")
    a("v_lshrrev_b32 v6, 1, v4")
    a("v_and_b32 v6, 4, v6")
    a("v_xor_b32 v5, v5, v6")
    a("v_lshl_add_u32 v20, v5, 4, v7")
    a("v_add_u32 v21, %d, v20" % (3 * STG))
    a("s_waitcnt lgkmcnt(0)")
    a("s_add_u32 s16, s6, %d" % H_OFF)
    a("s_addc_u32 s17, s7, 0")
    a("s_and_b32 s17, s17, 0xffff")
    a("s_mov_b32 s18, %d" % H_BYTES)
    a("s_mov_b32 s19, 0x00020000")
    a("s_mov_b32 s20, s4")
    a("s_and_b32 s21, s5, 0xffff")
    a("s_mov_b32 s22, %d" % (1376 * 1024))
    a("s_mov_b32 s23, 0x00020000")
    a("s_lshl_b32 s13, s12, 11")
    ACC = 32
    for r in range(ACC, ACC + 16):
        a("v_mov_b32 v%d, 0" % r)

    def dma(c):
        st = (c % NST) * STG
        a("s_movk_i32 s25, %d" % (128 * c))
        a("s_mov_b32 s26, %d" % (65536 * c))
        for jj in range(2):
            a("s_add_u32 s24, s13, %d" % (st + 1024 * jj))
            a("s_mov_b32 m0, s24")
            a("buffer_load_dwordx4 v%d, s[16:19], s25 offen lds" % (8 + jj))
        for jj in range(2):
            a("s_add_u32 s24, s13, %d" % (st + 8192 + 1024 * jj))
            a("s_mov_b32 m0, s24")
            a("buffer_load_dwordx4 v%d, s[20:23], s26 offen lds" % (10 + jj))
    for c in range(NST - 1):
        dma(c)
    a("v_and_b32 v4, 31, v1")
    a("v_and_b32 v6, 1, v2")
    a("v_lshl_add_u32 v4, v6, 5, v4")
    a("s_lshl_b32 s24, s9, 6")
    a("v_add_u32 v4, s24, v4")
    a("v_lshrrev_b32 v5, 5, v1")
    a("v_lshrrev_b32 v6, 1, v2")
    a("v_lshlrev_b32 v6, 5, v6")
    a("v_lshl_add_u32 v6, v5, 2, v6")
    a("s_lshl_b32 s24, s8, 6")
    a("v_add_u32 v6, s24, v6")
    a("v_lshlrev_b32 v22, 10, v4")
    a("v_lshl_add_u32 v22, v6, 1, v22")
    a("v_lshlrev_b32 v23, 12, v6")
    a("v_lshl_add_u32 v23, v4, 1, v23")
    a("v_add_u32 v23, %d, v23" % AT_OFF)
    XR = 48
    ATR = 56
    for rg in range(4):
        a("global_load_dwordx2 v[%d:%d], v22, s[28:29] offset:%d" % (XR + 2 * rg, XR + 2 * rg + 1, 16 * rg))
    for rg in range(4):
        if rg:
            a("v_add_u32 v23, %d, v23" % (8 * 4096))
        for r in range(4):
            if r < 1:
                a("global_load_ushort v%d, v23, s[6:7]" % (ATR + 4 * rg + r))
            else:
                pass
        a("v_add_u32 v24, 4096, v23")
        a("global_load_ushort v%d, v24, s[6:7]" % (ATR + 4 * rg + 1))
        a("v_add_u32 v24, 8192, v23")
        a("global_load_ushort v%d, v24, s[6:7]" % (ATR + 4 * rg + 2))
        a("v_add_u32 v24, 12288, v23")
        a("global_load_ushort v%d, v24, s[6:7]" % (ATR + 4 * rg + 3))
    NEXTRA = 20
    FR = 80
    for c in range(NCH):
        rem = min(NCH - 1, c + NST - 2) - c
        cnt = 4 * rem
        if c < NST - 1:
            cnt += NEXTRA
        cnt = min(cnt, 63)
        a("s_waitcnt vmcnt(%d)" % cnt)
        a("s_barrier")
        if c in (0, 1, 11):
            stamp(a, {0: 1, 1: 2, 11: 3}[c])
        stn = c % NST
        hi = stn >= 3
        st = (stn - 3 if hi else stn) * STG
        for s in range(4):
            b = FR + 8 * s
            a("ds_read_b128 v[%d:%d], v%d offset:%d" % (b, b + 3, (16 if hi else 12) + s, st))
            for jh in range(2):
                r = b + 4 + 2 * jh
                a("ds_read_b64_tr_b16 v[%d:%d], v%d offset:%d" % (r, r + 1, 21 if hi else 20, st + s * 2048 + jh * 512))
        if c + NST - 1 < NCH:
            dma(c + NST - 1)
        for s in range(4):
            b = FR + 8 * s
            a("s_waitcnt lgkmcnt(%d)" % ((3 - s) * 3))
            a("v_mfma_f32_32x32x16_bf16 v[%d:%d], v[%d:%d], v[%d:%d], v[%d:%d]" % (
                ACC, ACC + 15, b + 4, b + 7, b, b + 3, ACC, ACC + 15))
    stamp(a, 4)
    T = 112
    for rg in range(4):
        r = ACC + 4 * rg
        a("v_cvt_pk_bf16_f32 v%d, v%d, v%d" % (T, r, r + 1))
        a("v_cvt_pk_bf16_f32 v%d, v%d, v%d" % (T + 1, r + 2, r + 3))
        x = XR + 2 * rg
        a("v_lshlrev_b32 v%d, 16, v%d" % (T + 2, x))
        a("v_and_b32 v%d, 0xffff0000, v%d" % (T + 3, x))
        a("v_lshlrev_b32 v%d, 16, v%d" % (T + 4, x + 1))
        a("v_and_b32 v%d, 0xffff0000, v%d" % (T + 5, x + 1))
        for k in range(4):
            a("v_lshlrev_b32 v%d, 16, v%d" % (ATR + 4 * rg + k, ATR + 4 * rg + k))
        for k in range(4):
            a("v_add_f32 v%d, v%d, v%d" % (T + 2 + k, T + 2 + k, ATR + 4 * rg + k))
        a("v_cvt_pk_bf16_f32 v%d, v%d, v%d" % (T + 6, T + 2, T + 3))
        a("v_cvt_pk_bf16_f32 v%d, v%d, v%d" % (T + 7, T + 4, T + 5))
        a("v_lshlrev_b32 v%d, 16, v%d" % (T + 2, T + 6))
        a("v_and_b32 v%d, 0xffff0000, v%d" % (T + 3, T + 6))
        a("v_lshlrev_b32 v%d, 16, v%d" % (T + 4, T + 7))
        a("v_and_b32 v%d, 0xffff0000, v%d" % (T + 5, T + 7))
        a("v_lshlrev_b32 v%d, 16, v%d" % (T + 8, T))
        a("v_and_b32 v%d, 0xffff0000, v%d" % (T + 9, T))
        a("v_lshlrev_b32 v%d, 16, v%d" % (T + 10, T + 1))
        a("v_and_b32 v%d, 0xffff0000, v%d" % (T + 11, T + 1))
        for k in range(4):
            a("v_add_f32 v%d, v%d, v%d" % (T + 2 + k, T + 2 + k, T + 8 + k))
        o = 124 + 2 * rg
        a("v_cvt_pk_bf16_f32 v%d, v%d, v%d" % (o, T + 2, T + 3))
        a("v_cvt_pk_bf16_f32 v%d, v%d, v%d" % (o + 1, T + 4, T + 5))
        a("global_store_dwordx2 v22, v[%d:%d], s[30:31] offset:%d" % (o, o + 1, 16 * rg))
    dump(a, "g2", 5, 0)
    a("s_endpgm")


def gen_k3(a):
    a.raw(".p2align 8")
    a.raw(".type fin_kernel,@function")
    a.label("fin_kernel")
    a("s_cmp_ge_u32 s2, 256")
    a("s_cbranch_scc1 L_k3_exit")
    gen_gemm2(a)
    a.label("L_k3_exit")
    a("s_endpgm")


def desc(name, vgpr, sgpr=64 if DEBUG else 40):
    return """.amdhsa_kernel %s
  .amdhsa_next_free_vgpr %d
  .amdhsa_next_free_sgpr %d
  .amdhsa_accum_offset %d
  .amdhsa_group_segment_fixed_size 0
  .amdhsa_kernarg_size 120
  .amdhsa_user_sgpr_count 2
  .amdhsa_user_sgpr_kernarg_segment_ptr 1
  .amdhsa_system_sgpr_workgroup_id_x 1
.end_amdhsa_kernel
""" % (name, vgpr, sgpr, (vgpr + 3) // 4 * 4)


def main():
    ref = open(os.path.join(os.path.dirname(os.path.abspath(__file__)), "..", "cdna_kernels", NAME + ".s.ref")).read()
    head = []
    for line in ref.split("\n"):
        if line.startswith("; @launch") or line.startswith("; Override") or line.startswith("; grid="):
            continue
        if line.startswith(";"):
            head.append(line)
        else:
            break
    out = "\n".join(head) + "\n"
    out += "; @launch kernel=prep_kernel grid=(726,1,1) block=(256,1,1) lds=17408\n"
    out += "; @launch kernel=mid_kernel grid=(688,1,1) block=(256,1,1) lds=81920\n"
    out += "; @launch kernel=fin_kernel grid=(256,1,1) block=(256,1,1) lds=98304\n"
    out += '.amdgcn_target "amdgcn-amd-amdhsa--gfx950"\n.text\n'
    out += ".globl prep_kernel\n.globl mid_kernel\n.globl fin_kernel\n"
    for g in (gen_k1, gen_k2, gen_k3):
        a = Asm()
        g(a)
        out += a.text()
    out += '.section .rodata,"a"\n.p2align 6\n'
    out += desc("prep_kernel", 120)
    out += ".p2align 6\n" + desc("mid_kernel", 160)
    out += ".p2align 6\n" + desc("fin_kernel", 132)
    path = os.path.join(os.path.dirname(os.path.abspath(__file__)), "..", "cdna_kernels", NAME + ".s")
    if DEBUG:
        path = os.path.join(os.path.dirname(os.path.abspath(__file__)), "dbg.s")
    if os.environ.get("OUT"):
        path = os.environ["OUT"]
    open(path, "w").write(out)
    print("wrote", path, len(out))


if __name__ == "__main__":
    main()
```

```python
import sys
import os
sys.path.insert(0, os.path.dirname(os.path.abspath(__file__)))
from asmlib import Asm

NAME = "parallel_sum__ssm_conv_s4__dense_activation_relu__prompt"
MB = 1 << 20
XN_OFF = 0
XNT_OFF = 2 * MB
KR_OFF = 4 * MB
KR_PITCH = 4096
AT_OFF = 9 * MB
H_OFF = 12 * MB
H_BYTES = 32 * 22 * 8192
W1P_OFF = 32 * MB
W1P_STRIDE = 3 * MB // 2

LOG2E = "0x3fb8aa3b"
INV2PI = "0x3e22f983"


DEBUG = int(os.environ.get("DBG", "0"))
DBGWG = {}
for kv in os.environ.get("DBGWG", "").split(","):
    if kv:
        k, v = kv.split("=")
        DBGWG[k] = int(v)


LAUNCH = {"kgen": 0, "ln": 0, "conv": 1, "g1": 1, "g2": 2}


def stamp(a, idx):
    if DEBUG:
        if idx == 0:
            a("s_memrealtime s[60:61]")
        a("s_memtime s[%d:%d]" % (44 + 2 * idx, 45 + 2 * idx))


def dump(a, tag, n, slot):
    if not DEBUG or tag not in DBGWG:
        return
    stamp(a, n)
    a("s_load_dwordx2 s[42:43], s[0:1], 112")
    a("s_memrealtime s[62:63]")
    a("s_waitcnt lgkmcnt(0)")
    a("s_lshl_b32 s40, s2, 4")
    a("s_add_u32 s40, s40, %d" % (64 * MB + 65536 * LAUNCH[tag]))
    a("v_mov_b32 v2, s40")
    a("v_mov_b32 v4, s60")
    a("v_mov_b32 v5, s62")
    a("s_sub_u32 s40, s46, s44")
    a("v_mov_b32 v6, s40")
    a("s_getreg_b32 s40, hwreg(HW_REG_HW_ID)")
    a("s_getreg_b32 s41, hwreg(HW_REG_XCC_ID)")
    a("s_and_b32 s41, s41, 15")
    a("s_lshl_b32 s41, s41, 28")
    a("s_and_b32 s40, s40, 0xfffffff")
    a("s_or_b32 s40, s40, s41")
    a("v_mov_b32 v7, s40")
    a("v_cmp_eq_u32 vcc, 0, v0")
    a("s_and_saveexec_b64 s[40:41], vcc")
    a("s_cbranch_execz L_dbg_%s" % tag)
    a("global_store_dwordx4 v2, v[4:7], s[42:43]")
    a("s_cmp_lg_u32 s2, %d" % DBGWG[tag])
    a("s_cbranch_scc1 L_dbg_%s" % tag)
    a("v_cmp_eq_u32 vcc, 0, v0")
    a("s_and_saveexec_b64 s[40:41], vcc")
    a("s_cbranch_execz L_dbg_%s" % tag)
    a("s_load_dwordx2 s[42:43], s[0:1], 104")
    a("s_memrealtime s[40:41]")
    a("s_waitcnt lgkmcnt(0)")
    a("v_mov_b32 v2, %d" % (slot * 64))
    for i in range(n + 1):
        a("v_mov_b32 v3, s%d" % (44 + 2 * i))
        a("global_store_dword v2, v3, s[42:43] offset:%d" % (4 * i))
    a("v_mov_b32 v3, s40")
    a("global_store_dword v2, v3, s[42:43] offset:60")
    a.label("L_dbg_%s" % tag)


def fhex(x):
    import struct
    return "0x%08x" % struct.unpack("<I", struct.pack("<f", x))[0]


def gen_kgen(a):
    DP = "row_mask:0xf bank_mask:0xf"
    TAB = 12288
    a("; ---------------- K-gen ----------------")
    stamp(a, 0)
    a("s_load_dwordx8 s[8:15], s[0:1], 8")
    a("s_load_dwordx4 s[16:19], s[0:1], 40")
    a("s_load_dwordx2 s[20:21], s[0:1], 56")
    a("s_load_dwordx2 s[22:23], s[0:1], 112")
    a("v_and_b32 v1, 63, v0")
    a("v_lshrrev_b32 v2, 6, v0")
    a("v_and_b32 v3, 15, v1")
    a("v_lshrrev_b32 v4, 4, v1")
    a("s_lshl_b32 s3, s28, 8")
    a("v_lshlrev_b32 v5, 6, v2")
    a("v_lshl_add_u32 v5, v4, 4, v5")
    a("v_and_b32 v6, 7, v3")
    a("v_lshl_add_u32 v5, v6, 1, v5")
    a("v_add_u32 v5, s3, v5")
    a("s_lshl_b32 s4, s28, 1")
    a("v_mov_b32 v6, s4")
    a("s_waitcnt lgkmcnt(0)")
    a("global_load_ushort v7, v6, s[20:21]")
    for k in range(6):
        a("global_load_ushort v%d, v5, s[%d:%d]" % (8 + k, 8 + 2 * k, 9 + 2 * k))

    def rows(i, o0, o1, o2, t0, t1):
        a("v_lshrrev_b32 v%d, 3, v%d" % (o0, i))
        a("v_and_b32 v%d, 7, v%d" % (t0, i))
        a("v_lshl_add_u32 v%d, v%d, 7, v%d" % (o0, o0, t0))
        a("v_lshrrev_b32 v%d, 2, v%d" % (o1, i))
        a("v_and_b32 v%d, 3, v%d" % (t0, i))
        a("v_lshlrev_b32 v%d, 1, v%d" % (t0, t0))
        a("v_lshl_add_u32 v%d, v%d, 7, v%d" % (o1, o1, t0))
        a("v_add_u32 v%d, 0x100, v%d" % (o1, o1))
        a("v_subrev_u32 v%d, 8, v%d" % (t0, i))
        a("v_lshrrev_b32 v%d, 1, v%d" % (t0, t0))
        a("v_and_b32 v%d, 1, v%d" % (t1, i))
        a("v_lshlrev_b32 v%d, 2, v%d" % (t1, t1))
        a("v_lshl_add_u32 v%d, v%d, 7, v%d" % (t0, t0, t1))
        a("v_add_u32 v%d, 0x200, v%d" % (t0, t0))
        a("v_cmp_gt_u32 vcc, 8, v%d" % i)
        a("v_cndmask_b32 v%d, v%d, v%d, vcc" % (o1, t0, o1))
        if o2 is not None:
            a("v_lshlrev_b32 v%d, 7, v%d" % (o2, i))
            a("v_add_u32 v%d, 0x400, v%d" % (o2, o2))
    rows(3, 32, 33, 34, 35, 36)
    a("v_lshlrev_b32 v35, 3, v3")
    for r in range(32, 36):
        a("v_cvt_f32_u32 v%d, v%d" % (r, r))
    a("v_lshrrev_b32 v20, 4, v0")
    a("v_and_b32 v21, 15, v0")
    rows(20, 60, 61, None, 22, 23)
    a("s_movk_i32 s7, 16255")
    a("s_mov_b32 s24, 0x3f7f3f7f")
    for r in (60, 61):
        a("v_lshl_add_u32 v%d, v21, 3, v%d" % (r, r))
        a("v_cvt_f32_u32 v%d, v%d" % (r, r))
        a("v_lshrrev_b32 v%d, 16, v%d" % (r, r))
        a("v_max_u32 v%d, s7, v%d" % (r, r))
        a("v_subrev_u32 v%d, s7, v%d" % (r, r))
        a("v_lshlrev_b32 v%d, 1, v%d" % (r, r))
    a("v_lshlrev_b32 v62, 1, v0")
    a("v_add_u32 v62, %d, v62" % (2 * 1281))
    a("v_lshlrev_b32 v22, 3, v0")
    a("v_sub_u32 v22, 2047, v22")
    for jj in range(4):
        a("v_subrev_u32 v23, %d, v22" % (2 * jj))
        a("v_subrev_u32 v24, %d, v22" % (2 * jj + 1))
        a("v_cvt_f32_u32 v23, v23")
        a("v_cvt_f32_u32 v24, v24")
        a("v_cvt_pk_bf16_f32 v23, v23, v24")
        a("v_pk_sub_u16 v23, v23, s24 clamp")
        a("v_lshlrev_b32 v24, 1, v23")
        a("v_and_b32 v%d, 0xffff, v24" % (64 + 2 * jj))
        a("v_lshrrev_b32 v%d, 15, v23" % (65 + 2 * jj))
    for r in range(36, 48):
        a("v_mov_b32 v%d, 0" % r)
    a("s_mov_b32 s5, %s" % LOG2E)
    a("s_mov_b32 s6, %s" % INV2PI)
    a("s_waitcnt vmcnt(6)")
    stamp(a, 1)
    a("v_lshlrev_b32 v7, 16, v7")
    a("v_mul_f32 v7, s5, v7")
    a("v_exp_f32 v7, v7")
    a("v_cvt_pk_bf16_f32 v7, v7, v7")
    a("v_lshlrev_b32 v7, 16, v7")
    a("s_waitcnt vmcnt(0)")
    for k in range(6):
        a("v_lshlrev_b32 v%d, 16, v%d" % (8 + k, 8 + k))
    for k in range(4):
        a("v_mul_f32 v%d, v7, v%d" % (8 + k, 8 + k))
    RHO, TH, CR, CI, NCI = 48, 49, 50, 51, 52
    a("v_mul_f32 v%d, s5, v8" % RHO)
    a("v_mul_f32 v%d, s6, v9" % TH)
    a("v_mul_f32 v%d, v12, v10" % CR)
    a("v_mul_f32 v%d, v12, v11" % CI)
    a("v_fma_f32 v%d, -v13, v11, v%d" % (CR, CR))
    a("v_fma_f32 v%d, v13, v10, v%d" % (CI, CI))
    a("v_xor_b32 v%d, 0x80000000, v%d" % (NCI, CI))
    stamp(a, 2)
    pend = []
    for g in range(9):
        V = []
        M = []
        if g < 8:
            bc = "row_newbcast:%d %s" % (g, DP)
            L = [35, 32, 33, 34]
            o = 80 + 20 * (g & 1)
            for X in range(4):
                V.append("v_mul_f32_dpp v%d, v%d, v%d %s" % (o + 4 * X, TH, L[X], bc))
                V.append("v_mul_f32_dpp v%d, v%d, v%d %s" % (o + 1 + 4 * X, RHO, L[X], bc))
            for X in range(4):
                V.append("v_fract_f32 v%d, v%d" % (o + 4 * X, o + 4 * X))
                V.append("v_exp_f32 v%d, v%d" % (o + 1 + 4 * X, o + 1 + 4 * X))
            for X in range(4):
                V.append("v_cos_f32 v%d, v%d" % (o + 2 + 4 * X, o + 4 * X))
                V.append("v_sin_f32 v%d, v%d" % (o + 3 + 4 * X, o + 4 * X))
            V.append("v_mul_f32 v%d, v%d, v%d" % (o + 2, o + 1, o + 2))
            V.append("v_mul_f32 v%d, v%d, v%d" % (o + 3, o + 1, o + 3))
            for X in range(1, 4):
                V.append("v_mul_f32 v%d, v%d, v%d" % (o + 2 + 4 * X, o + 1 + 4 * X, o + 2 + 4 * X))
                V.append("v_mul_f32 v%d, -v%d, v%d" % (o + 3 + 4 * X, o + 1 + 4 * X, o + 3 + 4 * X))
            V.append("v_mul_f32_dpp v%d, v%d, v%d %s" % (o + 16, CR, o + 2, bc))
            V.append("v_mul_f32_dpp v%d, v%d, v%d %s" % (o + 17, CR, o + 3, bc))
            V.append("v_fmac_f32_dpp v%d, v%d, v%d %s" % (o + 16, NCI, o + 3, bc))
            V.append("v_fmac_f32_dpp v%d, v%d, v%d %s" % (o + 17, CI, o + 2, bc))
            for T in range(3):
                X = T + 1
                acc = 36 + 4 * T
                M.append("v_mfma_f32_16x16x4_f32 v[%d:%d], v%d, v%d, v[%d:%d]" % (acc, acc + 3, o + 2 + 4 * X, o + 16, acc, acc + 3))
            for T in range(3):
                X = T + 1
                acc = 36 + 4 * T
                M.append("v_mfma_f32_16x16x4_f32 v[%d:%d], v%d, v%d, v[%d:%d]" % (acc, acc + 3, o + 3 + 4 * X, o + 17, acc, acc + 3))
        pos = [1, 8, 14, 19, 24, 30]
        k = 0
        for vi, v in enumerate(V):
            if k < len(pend) and vi == pos[k]:
                a(pend[k])
                k += 1
            a(v)
        while k < len(pend):
            a(pend[k])
            k += 1
        pend = M
    stamp(a, 3)
    a("v_mul_u32_u24 v5, 768, v2")
    a("v_lshl_add_u32 v5, v4, 6, v5")
    a("v_add_u32 v5, v5, v3")
    a("v_lshlrev_b32 v5, 2, v5")
    for T in range(3):
        for r in range(4):
            a("ds_write_b32 v5, v%d offset:%d" % (36 + 4 * T + r, (16 * T + r) * 64))
    a("v_lshlrev_b32 v5, 2, v0")
    a("s_waitcnt lgkmcnt(0)")
    a("s_barrier")
    for k in range(3):
        for w in range(4):
            a("ds_read_b32 v%d, v5 offset:%d" % (8 + 4 * k + w, (k * 256 + w * 768) * 4))
    a("s_lshl_b32 s4, s28, 12")
    a("s_add_u32 s4, s4, %d" % KR_OFF)
    a("v_lshlrev_b32 v6, 4, v0")
    a("v_add_u32 v6, s4, v6")
    for k in range(3):
        b = 8 + 4 * k
        a("s_waitcnt lgkmcnt(%d)" % (8 - 4 * k + k))
        a("v_add_f32 v%d, v%d, v%d" % (b, b, b + 1))
        a("v_add_f32 v%d, v%d, v%d" % (b + 2, b + 2, b + 3))
        a("v_add_f32 v%d, v%d, v%d" % (b, b, b + 2))
        a("v_cvt_pk_bf16_f32 v%d, v%d, v%d" % (b, b, b))
        a("ds_write_b16 v%d, v%d offset:%d" % (60 + k, b, TAB))
    a("s_waitcnt lgkmcnt(0)")
    a("s_barrier")
    stamp(a, 4)
    for jj in range(4):
        a("ds_read_u16 v%d, v%d offset:%d" % (24 + jj, 64 + 2 * jj, TAB))
        a("ds_read_u16 v%d, v%d offset:%d" % (28 + jj, 65 + 2 * jj, TAB))
    for jj in range(4):
        a("s_waitcnt lgkmcnt(%d)" % (6 - 2 * jj))
        a("v_lshl_or_b32 v%d, v%d, 16, v%d" % (24 + jj, 28 + jj, 24 + jj))
    a("global_store_dwordx4 v6, v[24:27], s[22:23]")
    dump(a, "kgen", 5, 0)
    a("s_endpgm")


def gen_ln(a):
    a("; ---------------- LN ----------------")
    stamp(a, 0)
    a("s_load_dwordx2 s[4:5], s[0:1], 0")
    a("s_load_dwordx2 s[6:7], s[0:1], 112")
    a("s_sub_u32 s3, s2, 512")
    a("s_and_b32 s8, s3, 7")
    a("s_lshr_b32 s3, s3, 3")
    a("s_lshl_b32 s8, s8, 8")
    a("s_lshl_b32 s3, s3, 4")
    a("s_add_u32 s3, s3, s8")
    a("v_and_b32 v1, 63, v0")
    a("v_lshrrev_b32 v2, 6, v0")
    a("v_lshlrev_b32 v3, 2, v2")
    a("v_add_u32 v3, s3, v3")
    a("v_lshlrev_b32 v3, 10, v3")
    a("v_lshl_add_u32 v3, v1, 4, v3")
    a("s_waitcnt lgkmcnt(0)")
    for rr in range(4):
        a("global_load_dwordx4 v[%d:%d], v3, s[4:5] offset:%d" % (8 + 4 * rr, 11 + 4 * rr, 1024 * rr))
    a("s_mov_b32 s8, %s" % fhex(1.0 / 512))
    a("s_mov_b32 s9, %s" % fhex(1e-5))
    for rr in range(4):
        a("s_waitcnt vmcnt(%d)" % (3 - rr))
        for k in range(4):
            a("v_lshlrev_b32 v%d, 16, v%d" % (32 + 8 * rr + 2 * k, 8 + 4 * rr + k))
            a("v_and_b32 v%d, 0xffff0000, v%d" % (33 + 8 * rr + 2 * k, 8 + 4 * rr + k))
    stamp(a, 1)
    for rr in range(4):
        b = 32 + 8 * rr
        a("v_add_f32 v%d, v%d, v%d" % (24 + rr, b, b + 1))
    for k in range(2, 8):
        for rr in range(4):
            a("v_add_f32 v%d, v%d, v%d" % (24 + rr, 24 + rr, 32 + 8 * rr + k))

    def wave_reduce(regs):
        for sh in ("row_shr:1", "row_shr:2", "row_shr:4", "row_shr:8"):
            for r in regs:
                a("v_add_f32_dpp v%d, v%d, v%d %s row_mask:0xf bank_mask:0xf bound_ctrl:0" % (r, r, r, sh))
        for r in regs:
            a("v_add_f32_dpp v%d, v%d, v%d row_bcast:15 row_mask:0xa bank_mask:0xf" % (r, r, r))
        for r in regs:
            a("v_add_f32_dpp v%d, v%d, v%d row_bcast:31 row_mask:0xc bank_mask:0xf" % (r, r, r))
    wave_reduce([24, 25, 26, 27])
    for rr in range(4):
        a("v_mul_f32 v%d, s8, v%d" % (24 + rr, 24 + rr))
    for rr in range(4):
        a("v_readlane_b32 s%d, v%d, 63" % (10 + rr, 24 + rr))
    for rr in range(4):
        b = 32 + 8 * rr
        a("v_subrev_f32 v%d, s%d, v%d" % (64 + rr, 10 + rr, b))
    for rr in range(4):
        a("v_mul_f32 v%d, v%d, v%d" % (28 + rr, 64 + rr, 64 + rr))
    for k in range(1, 8):
        for rr in range(4):
            a("v_subrev_f32 v%d, s%d, v%d" % (64 + rr, 10 + rr, 32 + 8 * rr + k))
        for rr in range(4):
            a("v_fmac_f32 v%d, v%d, v%d" % (28 + rr, 64 + rr, 64 + rr))
    wave_reduce([28, 29, 30, 31])
    for rr in range(4):
        a("v_mul_f32 v%d, s8, v%d" % (28 + rr, 28 + rr))
    for rr in range(4):
        a("v_cvt_pk_bf16_f32 v%d, v%d, v%d" % (28 + rr, 28 + rr, 24 + rr))
    for rr in range(4):
        a("v_and_b32 v%d, 0xffff0000, v%d" % (24 + rr, 28 + rr))
        a("v_lshlrev_b32 v%d, 16, v%d" % (28 + rr, 28 + rr))
    for rr in range(4):
        a("v_add_f32 v%d, s9, v%d" % (28 + rr, 28 + rr))
    for rr in range(4):
        a("v_cvt_pk_bf16_f32 v%d, v%d, v%d" % (28 + rr, 28 + rr, 28 + rr))
    for rr in range(4):
        a("v_lshlrev_b32 v%d, 16, v%d" % (28 + rr, 28 + rr))
    for rr in range(4):
        a("v_sqrt_f32 v%d, v%d" % (28 + rr, 28 + rr))
    for rr in range(4):
        a("v_cvt_pk_bf16_f32 v%d, v%d, v%d" % (28 + rr, 28 + rr, 28 + rr))
    for rr in range(4):
        a("v_lshlrev_b32 v%d, 16, v%d" % (28 + rr, 28 + rr))
    for rr in range(4):
        a("v_rcp_f32 v%d, v%d" % (64 + rr, 28 + rr))
    for rr in range(4):
        a("v_readlane_b32 s%d, v%d, 63" % (10 + rr, 24 + rr))
        a("v_readlane_b32 s%d, v%d, 63" % (14 + rr, 28 + rr))
        a("v_readlane_b32 s%d, v%d, 63" % (18 + rr, 64 + rr))
    stamp(a, 2)
    for rr in range(4):
        b = 32 + 8 * rr
        for k in range(4):
            x0, x1 = b + 2 * k, b + 2 * k + 1
            a("v_subrev_f32 v%d, s%d, v%d" % (x0, 10 + rr, x0))
            a("v_subrev_f32 v%d, s%d, v%d" % (x1, 10 + rr, x1))
        for k in range(4):
            x0, x1 = b + 2 * k, b + 2 * k + 1
            a("v_cvt_pk_bf16_f32 v%d, v%d, v%d" % (68 + k, x0, x1))
        for k in range(4):
            x0, x1 = b + 2 * k, b + 2 * k + 1
            a("v_lshlrev_b32 v%d, 16, v%d" % (x0, 68 + k))
            a("v_and_b32 v%d, 0xffff0000, v%d" % (x1, 68 + k))
        for k in range(8):
            a("v_mul_f32 v%d, s%d, v%d" % (72 + k, 18 + rr, b + k))
        for k in range(8):
            a("v_fma_f32 v%d, -v%d, s%d, v%d" % (b + k, 72 + k, 14 + rr, b + k))
        for k in range(8):
            a("v_fma_f32 v%d, v%d, s%d, v%d" % (72 + k, b + k, 18 + rr, 72 + k))
        for k in range(4):
            a("v_cvt_pk_bf16_f32 v%d, v%d, v%d" % (8 + 4 * rr + k, 72 + 2 * k, 73 + 2 * k))
    a("v_lshlrev_b32 v5, 2, v2")
    a("v_mul_u32_u24 v5, 1088, v5")
    a("v_lshl_add_u32 v5, v1, 4, v5")
    a("s_lshr_b32 s8, s3, 7")
    a("s_lshl_b32 s8, s8, 17")
    a("s_and_b32 s9, s3, 127")
    a("s_lshl_b32 s9, s9, 6")
    a("s_add_u32 s8, s8, s9")
    a("v_lshrrev_b32 v4, 2, v1")
    a("v_lshlrev_b32 v4, 13, v4")
    a("v_lshl_add_u32 v4, v2, 8, v4")
    a("v_xor_b32 v6, v1, v2")
    a("v_and_b32 v6, 3, v6")
    a("v_lshl_add_u32 v4, v6, 4, v4")
    a("v_add_u32 v4, s8, v4")
    for rr in range(4):
        a("global_store_dwordx4 v4, v[%d:%d], s[6:7] offset:%d" % (8 + 4 * rr, 11 + 4 * rr, 64 * rr))
        a("ds_write_b128 v5, v[%d:%d] offset:%d" % (8 + 4 * rr, 11 + 4 * rr, 1088 * rr))
    a("s_waitcnt lgkmcnt(0)")
    a("s_barrier")
    stamp(a, 3)
    a("v_and_b32 v6, 15, v1")
    a("v_lshrrev_b32 v7, 4, v1")
    a("v_lshrrev_b32 v24, 2, v6")
    a("v_mul_u32_u24 v24, 1088, v24")
    a("v_and_b32 v25, 3, v6")
    a("v_lshlrev_b32 v25, 3, v25")
    a("v_add_u32 v24, v24, v25")
    a("v_lshlrev_b32 v25, 7, v2")
    a("v_lshl_add_u32 v25, v7, 4, v25")
    a("v_lshl_add_u32 v24, v25, 1, v24")
    for pp in range(2):
        for rb in range(4):
            r = 32 + 8 * pp + 2 * rb
            a("ds_read_b64_tr_b16 v[%d:%d], v24 offset:%d" % (r, r + 1, rb * 4 * 1088 + pp * 128))
    a("v_add_u32 v25, v25, v6")
    a("v_lshlrev_b32 v25, 12, v25")
    a("s_lshl_b32 s3, s3, 1")
    a("s_add_u32 s3, s3, %d" % XNT_OFF)
    a("v_add_u32 v25, s3, v25")
    a("v_add_u32 v26, %d, v25" % (64 * 4096))
    a("s_waitcnt lgkmcnt(4)")
    a("global_store_dwordx4 v25, v[32:35], s[6:7]")
    a("global_store_dwordx4 v25, v[36:39], s[6:7] offset:16")
    a("s_waitcnt lgkmcnt(0)")
    a("global_store_dwordx4 v26, v[40:43], s[6:7]")
    a("global_store_dwordx4 v26, v[44:47], s[6:7] offset:16")
    dump(a, "ln", 4, 1)
    a("s_endpgm")


def gen_k1(a):
    a.raw(".p2align 8")
    a.raw(".type prep_kernel,@function")
    a.label("prep_kernel")
    a("s_cmp_ge_u32 s2, 1344")
    a("s_cbranch_scc1 L_k1_exit")
    a("s_cmp_ge_u32 s2, 640")
    a("s_cbranch_scc1 L_k1_pf")
    a("s_cmp_ge_u32 s2, 512")
    a("s_cbranch_scc1 L_k1_ln")
    a("s_mov_b32 s28, s2")
    gen_kgen(a)
    a.label("L_k1_ln")
    a("s_setprio 3")
    gen_ln(a)
    a.label("L_k1_pf")
    a("s_load_dwordx4 s[4:7], s[0:1], 80")
    a("s_load_dwordx2 s[8:9], s[0:1], 112")
    a("s_sub_u32 s14, s2, 640")
    a("s_and_b32 s15, s14, 7")
    a("s_lshr_b32 s3, s14, 3")
    a("s_lshr_b32 s10, s3, 3")
    a("s_and_b32 s11, s3, 7")
    a("s_mul_i32 s11, s11, %d" % (64 * 2752))
    a("s_lshl_b32 s12, s10, 8")
    a("s_add_u32 s11, s11, s12")
    a("v_lshrrev_b32 v1, 4, v0")
    a("v_and_b32 v2, 3, v1")
    a("v_lshlrev_b32 v2, 2, v2")
    a("v_and_b32 v3, 15, v0")
    a("v_xor_b32 v2, v2, v3")
    a("v_mul_u32_u24 v1, 2752, v1")
    a("v_lshl_add_u32 v1, v2, 4, v1")
    a("v_add_u32 v1, s11, v1")
    a("s_lshl_b32 s12, s10, 4")
    a("v_add_u32 v2, s12, v2")
    a("v_lshlrev_b32 v3, 4, v0")
    a("s_lshl_b32 s13, s3, 14")
    a("v_add_u32 v3, s13, v3")
    a("s_waitcnt lgkmcnt(0)")
    a("s_mov_b32 s16, s4")
    a("s_and_b32 s17, s5, 0xffff")
    a("s_mov_b32 s18, %d" % (512 * 2752))
    a("s_mov_b32 s19, 0x00020000")
    a("s_mov_b32 s20, s6")
    a("s_and_b32 s21, s7, 0xffff")
    a("s_mov_b32 s22, %d" % (1376 * 1024))
    a("s_mov_b32 s23, 0x00020000")
    for m in range(4):
        a("s_mov_b32 s24, %d" % (m * 16 * 2752))
        a("buffer_load_dwordx4 v[%d:%d], v1, s[16:19], s24 offen" % (8 + 4 * m, 11 + 4 * m))
    a("v_lshlrev_b32 v5, 4, v0")
    a("s_lshl_b32 s24, s14, 12")
    a("buffer_load_dwordx4 v[24:27], v5, s[20:23], s24 offen")
    a("v_cmp_gt_u32 vcc, 172, v2")
    a("s_mul_i32 s15, s15, %d" % W1P_STRIDE)
    a("s_add_u32 s15, s15, %d" % W1P_OFF)
    a("v_add_u32 v3, s15, v3")
    a("v_add_u32 v4, 8192, v3")
    for m in range(4):
        if m == 0:
            a("s_waitcnt vmcnt(1)")
        for r in range(4):
            a("v_cndmask_b32 v%d, 0, v%d, vcc" % (8 + 4 * m + r, 8 + 4 * m + r))
        a("global_store_dwordx4 v%d, v[%d:%d], s[8:9] offset:%d" % (3 + (m >> 1), 8 + 4 * m, 11 + 4 * m, 0))
        if (m & 1) == 0:
            a("v_add_u32 v%d, 4096, v%d" % (3 + (m >> 1), 3 + (m >> 1)))
    a("s_waitcnt vmcnt(0)")
    a.label("L_k1_exit")
    a("s_endpgm")


def gen_conv(a):
    U = 512
    KC0 = 4608
    RED = 8192
    a("; ---------------- conv ----------------")
    stamp(a, 0)
    a("s_load_dwordx2 s[4:5], s[0:1], 64")
    a("s_load_dwordx2 s[6:7], s[0:1], 112")
    a("v_lshrrev_b32 v10, 8, v0")
    a("v_readfirstlane_b32 s27, v10")
    a("v_and_b32 v10, 255, v0")
    a("v_and_b32 v1, 63, v0")
    a("v_lshrrev_b32 v2, 6, v10")
    a("v_and_b32 v3, 15, v1")
    a("v_lshrrev_b32 v4, 4, v1")
    a("s_and_b32 s26, s28, 7")
    a("s_lshr_b32 s28, s28, 3")
    a("s_mov_b32 s30, s28")
    a("s_load_dwordx2 s[32:33], s[0:1], 88")
    a("s_lshl_b32 s25, s28, 1")
    a("s_add_u32 s25, s25, s27")
    a("s_cmp_lt_u32 s28, 12")
    a("s_cbranch_scc1 L_cv_q")
    a("s_sub_u32 s25, s25, 20")
    a("s_cmp_ge_u32 s28, 32")
    a("s_cbranch_scc1 L_cv_q")
    a("s_cmp_eq_u32 s27, 0")
    a("s_cbranch_scc0 L_k2_exit")
    a("s_add_u32 s25, s28, 12")
    a.label("L_cv_q")
    a("s_lshl_b32 s28, s25, 3")
    a("s_add_u32 s28, s28, s26")
    a("s_mul_i32 s29, s27, 40960")
    a("s_lshl_b32 s3, s28, 12")
    a("s_add_u32 s8, s3, %d" % XNT_OFF)
    a("s_mul_i32 s9, s28, %d" % KR_PITCH)
    a("s_add_u32 s9, s9, %d" % KR_OFF)
    a("v_lshlrev_b32 v5, 4, v10")
    a("v_add_u32 v6, s8, v5")
    a("v_add_u32 v7, s9, v5")
    a("s_lshl_b32 s10, s28, 1")
    a("v_mov_b32 v8, s10")
    a("s_waitcnt lgkmcnt(0)")
    a("v_subrev_u32 v11, 4, v5")
    a("v_max_i32 v11, 0, v11")
    a("v_add_u32 v11, s9, v11")
    a("global_load_dwordx4 v[48:51], v6, s[6:7]")
    a("global_load_dwordx4 v[52:55], v7, s[6:7]")
    a("global_load_dword v56, v11, s[6:7]")
    a("global_load_ushort v9, v8, s[4:5]")
    a("v_add_u32 v5, s29, v5")
    for r in range(64, 68):
        a("v_mov_b32 v%d, 0" % r)
    a("v_and_b32 v7, 31, v10")
    a("v_lshlrev_b32 v7, 4, v7")
    a("v_add_u32 v7, s29, v7")
    a("ds_write_b128 v7, v[64:67]")
    a("v_and_b32 v7, 15, v10")
    a("v_min_u32 v11, 14, v7")
    a("v_lshlrev_b32 v11, 2, v11")
    a("v_add_u32 v11, s29, v11")
    a("ds_write_b32 v11, v64 offset:%d" % (KC0 + 4100))
    a("v_lshlrev_b32 v7, 2, v7")
    a("v_add_u32 v7, %d, v7" % (KC0 + 4160 + 4096))
    a("v_mov_b32 v11, %d" % (KC0 + 4096))
    a("s_movk_i32 s14, 255")
    a("v_cmp_eq_u32 vcc, s14, v10")
    a("v_cndmask_b32 v68, v7, v11, vcc")
    a("v_add_u32 v68, s29, v68")
    a("v_cndmask_b32 v69, 0, 1, vcc")
    a("v_lshrrev_b32 v7, 1, v4")
    a("v_and_b32 v11, 1, v4")
    a("v_sub_u32 v6, v3, v7")
    a("v_lshlrev_b32 v6, 5, v6")
    a("v_lshl_add_u32 v6, v11, 4, v6")
    a("v_lshlrev_b32 v16, 6, v2")
    a("v_sub_u32 v6, v6, v16")
    a("v_add_u32 v6, %d, v6" % (U - 256))
    a("v_add_u32 v6, s29, v6")
    a("v_and_b32 v16, 1, v3")
    a("v_lshlrev_b32 v12, 5, v2")
    a("v_lshl_add_u32 v12, v7, 4, v12")
    a("v_add_u32 v12, v12, v3")
    a("v_add_u32 v12, v12, v16")
    a("v_lshlrev_b32 v13, 3, v11")
    a("v_sub_u32 v12, v13, v12")
    a("v_add_u32 v12, %d, v12" % (2048 - 384))
    a("v_lshlrev_b32 v12, 1, v12")
    a("v_mul_u32_u24 v16, 4160, v16")
    a("v_add_u32 v12, v12, v16")
    a("v_add_u32 v12, %d, v12" % KC0)
    a("v_add_u32 v12, s29, v12")
    a("v_subrev_u32 v13, 1024, v12")
    a("v_subrev_u32 v14, 2048, v12")
    a("v_subrev_u32 v15, 3072, v12")
    a("s_waitcnt vmcnt(3)")
    a("ds_write_b128 v5, v[48:51] offset:%d" % U)
    a("s_waitcnt vmcnt(1)")
    a("ds_write_b128 v5, v[52:55] offset:%d" % (KC0 + 4160))
    a("v_cmp_eq_u32 vcc, 0, v10")
    a("v_cndmask_b32 v56, v56, 0, vcc")
    a("v_alignbit_b32 v60, v52, v56, 16")
    a("v_alignbit_b32 v61, v53, v52, 16")
    a("v_alignbit_b32 v62, v54, v53, 16")
    a("v_alignbit_b32 v63, v55, v54, 16")
    a("ds_write_b128 v5, v[60:63] offset:%d" % KC0)
    a("v_lshrrev_b32 v57, 16, v55")
    a("v_mul_u32_u24 v57, v57, v69")
    a("ds_write_b32 v68, v57")
    a("s_waitcnt vmcnt(0) lgkmcnt(0)")
    a("s_barrier")
    stamp(a, 1)
    ACC, BF, AR = 16, 48, 112
    for mi in range(16):
        a("ds_read_b128 v[%d:%d], v6 offset:%d" % (BF + 4 * mi, BF + 4 * mi + 3, 256 * mi))
    for r in range(ACC, ACC + 32):
        a("v_mov_b32 v%d, 0" % r)

    def issueA(i):
        G, ii = i >> 2, i & 3
        base = 12 + G
        r = AR + 4 * (i & 3)
        o = 64 * (3 - ii)
        a("ds_read2_b32 v[%d:%d], v%d offset0:%d offset1:%d" % (r, r + 1, base, o, o + 1))
        a("ds_read2_b32 v[%d:%d], v%d offset0:%d offset1:%d" % (r + 2, r + 3, base, o + 2, o + 3))
    for i in range(3):
        issueA(i)
    for i in range(16):
        nxt = min(15, i + 2) - i
        a("s_waitcnt lgkmcnt(%d)" % (2 * nxt))
        r = AR + 4 * (i & 3)
        first = True
        for t in range(8):
            if i <= 2 * t + 1:
                mi = 2 * t - i + 1
                a("v_mfma_f32_16x16x32_bf16 v[%d:%d], v[%d:%d], v[%d:%d], v[%d:%d]" % (
                    ACC + 4 * t, ACC + 4 * t + 3, r, r + 3, BF + 4 * mi, BF + 4 * mi + 3, ACC + 4 * t, ACC + 4 * t + 3))
                if first and i + 3 < 16:
                    issueA(i + 3)
                    first = False
    stamp(a, 2)
    a("v_lshlrev_b32 v5, 13, v2")
    a("v_lshl_add_u32 v5, v1, 4, v5")
    a("v_add_u32 v5, s29, v5")
    a("s_barrier")
    for t in range(8):
        a("ds_write_b128 v5, v[%d:%d] offset:%d" % (ACC + 4 * t, ACC + 4 * t + 3, RED + 1024 * t))
    a("v_lshlrev_b32 v5, 11, v2")
    a("v_lshl_add_u32 v5, v1, 4, v5")
    a("v_add_u32 v5, s29, v5")
    a("v_lshlrev_b32 v6, 9, v2")
    a("v_lshl_add_u32 v6, v3, 4, v6")
    a("v_lshl_add_u32 v6, v4, 2, v6")
    a("v_lshlrev_b32 v6, 1, v6")
    a("v_add_u32 v7, s29, v6")
    a("s_waitcnt lgkmcnt(0)")
    a("s_barrier")
    for tt in range(2):
        for w2 in range(4):
            r = 48 + 16 * tt + 4 * w2
            a("ds_read_b128 v[%d:%d], v5 offset:%d" % (r, r + 3, RED + w2 * 8192 + tt * 1024))
        a("ds_read_b64 v[%d:%d], v7 offset:%d" % (80 + 2 * tt, 81 + 2 * tt, U + 512 * tt))
    a("v_lshlrev_b32 v9, 16, v9")
    a("s_add_u32 s3, s3, %d" % AT_OFF)
    a("v_add_u32 v6, s3, v6")
    for tt in range(2):
        a("s_waitcnt lgkmcnt(%d)" % (5 if tt == 0 else 0))
        b = 48 + 16 * tt
        for r in range(4):
            a("v_add_f32 v%d, v%d, v%d" % (b + r, b + r, b + 4 + r))
            a("v_add_f32 v%d, v%d, v%d" % (b + 8 + r, b + 8 + r, b + 12 + r))
        for r in range(4):
            a("v_add_f32 v%d, v%d, v%d" % (b + r, b + r, b + 8 + r))
        a("v_cvt_pk_bf16_f32 v%d, v%d, v%d" % (b + 4, b, b + 1))
        a("v_cvt_pk_bf16_f32 v%d, v%d, v%d" % (b + 5, b + 2, b + 3))
        x = 80 + 2 * tt
        a("v_lshlrev_b32 v%d, 16, v%d" % (b + 8, x))
        a("v_and_b32 v%d, 0xffff0000, v%d" % (b + 9, x))
        a("v_lshlrev_b32 v%d, 16, v%d" % (b + 10, x + 1))
        a("v_and_b32 v%d, 0xffff0000, v%d" % (b + 11, x + 1))
        for r in range(4):
            a("v_mul_f32 v%d, v9, v%d" % (b + 8 + r, b + 8 + r))
        a("v_cvt_pk_bf16_f32 v%d, v%d, v%d" % (b + 6, b + 8, b + 9))
        a("v_cvt_pk_bf16_f32 v%d, v%d, v%d" % (b + 7, b + 10, b + 11))
        a("v_lshlrev_b32 v%d, 16, v%d" % (b + 0, b + 4))
        a("v_and_b32 v%d, 0xffff0000, v%d" % (b + 1, b + 4))
        a("v_lshlrev_b32 v%d, 16, v%d" % (b + 2, b + 5))
        a("v_and_b32 v%d, 0xffff0000, v%d" % (b + 3, b + 5))
        a("v_lshlrev_b32 v%d, 16, v%d" % (b + 8, b + 6))
        a("v_and_b32 v%d, 0xffff0000, v%d" % (b + 9, b + 6))
        a("v_lshlrev_b32 v%d, 16, v%d" % (b + 10, b + 7))
        a("v_and_b32 v%d, 0xffff0000, v%d" % (b + 11, b + 7))
        for r in range(4):
            a("v_add_f32 v%d, v%d, v%d" % (b + r, b + r, b + 8 + r))
        a("v_cvt_pk_bf16_f32 v%d, v%d, v%d" % (b + 4, b, b + 1))
        a("v_cvt_pk_bf16_f32 v%d, v%d, v%d" % (b + 5, b + 2, b + 3))
        a("global_store_dwordx2 v6, v[%d:%d], s[6:7] offset:%d" % (b + 4, b + 5, 512 * tt))
    a("s_cmp_ge_u32 s30, 10")
    a("s_cbranch_scc1 L_cv_end")
    a("v_lshrrev_b32 v2, 6, v0")
    a("v_readfirstlane_b32 s24, v2")
    a("s_lshl_b32 s25, s30, 3")
    a("s_add_u32 s24, s24, s25")
    a("s_mul_i32 s24, s24, 18432")
    a("v_lshlrev_b32 v3, 4, v1")
    a("v_add_u32 v3, s24, v3")
    a("s_mov_b32 s20, s32")
    a("s_and_b32 s21, s33, 0xffff")
    a("s_mov_b32 s22, %d" % (1376 * 1024))
    a("s_mov_b32 s23, 0x00020000")
    for i in range(18):
        a("s_mov_b32 s24, %d" % (1024 * i))
        a("buffer_load_dwordx4 v[%d:%d], v3, s[20:23], s24 offen" % (48 + 4 * i, 51 + 4 * i))
    a("s_waitcnt vmcnt(0)")
    a.label("L_cv_end")
    dump(a, "conv", 3, 1)
    a("s_endpgm")


def gen_gemm1(a):
    NST = 5
    STG = 16384
    NCH = 16
    a("; ---------------- GEMM1 ----------------")
    stamp(a, 0)
    a("s_load_dwordx2 s[4:5], s[0:1], 80")
    a("s_load_dwordx2 s[6:7], s[0:1], 112")
    a("s_and_b32 s9, s2, 7")
    a("s_lshr_b32 s8, s2, 4")
    a("s_bfe_u32 s10, s2, 0x10003")
    a("s_lshl_b32 s9, s9, 1")
    a("s_add_u32 s9, s9, s10")
    a("s_lshl_b32 s10, s8, 8")
    a("s_lshl_b32 s11, s9, 17")
    a("v_and_b32 v1, 63, v0")
    a("v_lshrrev_b32 v2, 6, v0")
    a("v_readfirstlane_b32 s12, v2")
    a("v_and_b32 v2, 3, v2")
    a("s_cmp_lt_u32 s12, 4")
    a("s_cbranch_scc1 L_g1_comp")
    a("s_and_b32 s12, s12, 3")
    a("s_lshl_b32 s13, s12, 11")
    a("v_lshlrev_b32 v3, 4, v1")
    a("v_add_u32 v3, s13, v3")
    a("v_add_u32 v8, s11, v3")
    a("s_lshl_b32 s14, s8, 17")
    a("s_add_u32 s14, s14, %d" % W1P_OFF)
    a("s_and_b32 s15, s2, 7")
    a("s_mul_i32 s15, s15, %d" % W1P_STRIDE)
    a("s_add_u32 s14, s14, s15")
    a("v_add_u32 v10, s14, v3")
    a("s_waitcnt lgkmcnt(0)")
    a("s_mov_b32 s16, s6")
    a("s_and_b32 s17, s7, 0xffff")
    a("s_mov_b32 s18, %d" % (64 * MB))
    a("s_mov_b32 s19, 0x00020000")

    def dma(c):
        st = (c % NST) * STG
        a("s_mov_b32 s25, %d" % (8192 * c))
        a("s_add_u32 s24, s13, %d" % st)
        a("s_mov_b32 m0, s24")
        a("s_add_u32 s26, s13, %d" % (st + 8192))
        for jj in range(2):
            a("buffer_load_dwordx4 v8, s[16:19], s25 offen offset:%d lds" % (1024 * jj))
        a("s_mov_b32 m0, s26")
        for jj in range(2):
            a("buffer_load_dwordx4 v10, s[16:19], s25 offen offset:%d lds" % (1024 * jj))
    issued = 2
    dma(0)
    dma(1)
    for c in range(NCH):
        a("s_waitcnt vmcnt(%d)" % (4 * (issued - 1 - c)))
        a("s_barrier")
        n = 0
        while issued < NCH and issued <= c + NST - 1 and n < 2:
            dma(issued)
            issued += 1
            n += 1
    a("s_endpgm")
    a.label("L_g1_comp")
    a.flush_hazards(4)
    ACC = 16
    FR = 80
    a("v_and_b32 v4, 31, v1")
    a("v_lshrrev_b32 v5, 5, v1")
    a("v_and_b32 v6, 1, v2")
    a("v_lshl_add_u32 v4, v6, 6, v4")
    a("v_lshrrev_b32 v6, 2, v4")
    a("v_and_b32 v6, 3, v6")
    for s_ in range(2):
        a("v_add_u32 v7, %d, v5" % (2 * s_))
        a("v_xor_b32 v7, v7, v6")
        a("v_lshlrev_b32 v7, 4, v7")
        a("v_lshl_add_u32 v%d, v4, 6, v7" % (8 + s_))
    a("v_and_b32 v4, 15, v1")
    a("v_lshrrev_b32 v5, 4, v1")
    a("v_lshrrev_b32 v6, 1, v5")
    a("v_lshrrev_b32 v7, 2, v4")
    a("v_lshl_add_u32 v3, v6, 3, v7")
    a("v_lshlrev_b32 v3, 8, v3")
    a("v_and_b32 v6, 1, v4")
    a("v_lshl_add_u32 v3, v6, 3, v3")
    a("v_add_u32 v3, 8192, v3")
    a("v_and_b32 v5, 1, v5")
    a("v_lshlrev_b32 v5, 1, v5")
    a("v_bfe_u32 v6, v4, 1, 1")
    a("v_add_u32 v5, v5, v6")
    a("v_lshrrev_b32 v6, 1, v2")
    a("v_lshl_add_u32 v5, v6, 3, v5")
    a("v_lshlrev_b32 v7, 2, v7")
    for ft in range(2):
        a("v_add_u32 v6, %d, v5" % (4 * ft))
        a("v_xor_b32 v6, v6, v7")
        a("v_lshl_add_u32 v%d, v6, 4, v3" % (10 + ft))
    for r in range(4):
        a("v_add_u32 v%d, %d, v%d" % (12 + r, 3 * STG, 8 + r))
    for r in range(ACC, ACC + 64):
        a("v_mov_b32 v%d, 0" % r)

    def reads(j):
        c, s_ = j >> 1, j & 1
        stn = c % NST
        hi = stn >= 3
        st = (stn - 3 if hi else stn) * STG
        ab = 12 if hi else 8
        b = FR + 16 * (j % 3)
        out = []
        for lt in range(2):
            out.append("ds_read_b128 v[%d:%d], v%d offset:%d" % (b + 4 * lt, b + 4 * lt + 3, ab + s_, st + 2048 * lt))
        for ft in range(2):
            for jh in range(2):
                r = b + 8 + 4 * ft + 2 * jh
                out.append("ds_read_b64_tr_b16 v[%d:%d], v%d offset:%d" % (r, r + 1, ab + 2 + ft, st + s_ * 4096 + jh * 1024))
        return out

    def mfmas(j):
        b = FR + 16 * (j % 3)
        out = []
        for ft in range(2):
            for lt in range(2):
                acc = ACC + 16 * (2 * lt + ft)
                out.append("v_mfma_f32_32x32x16_bf16 v[%d:%d], v[%d:%d], v[%d:%d], v[%d:%d]" % (
                    acc, acc + 15, b + 8 + 4 * ft, b + 11 + 4 * ft, b + 4 * lt, b + 4 * lt + 3, acc, acc + 15))
        return out
    for c in range(NCH):
        a("s_waitcnt lgkmcnt(0)")
        a("s_barrier")
        if c in (0, 1, 8):
            stamp(a, {0: 1, 1: 2, 8: 3}[c])
        R0, R1 = reads(2 * c), reads(2 * c + 1)
        M = mfmas(2 * c - 1) if c > 0 else []
        R = R0 + R1
        for k in range(4):
            if M:
                a(M[k])
            for x in R[3 * k:3 * k + 3]:
                a(x)
        a("s_waitcnt lgkmcnt(6)")
        for x in mfmas(2 * c):
            a(x)
    a("s_waitcnt lgkmcnt(0)")
    for x in mfmas(2 * NCH - 1):
        a(x)
    stamp(a, 4)
    a("v_and_b32 v4, 31, v1")
    a("v_lshrrev_b32 v5, 5, v1")
    a("v_bfe_u32 v6, v4, 1, 3")
    a("s_lshl_b32 s24, s12, 13")
    a("s_add_u32 s24, s24, 16384")
    a("v_lshlrev_b32 v4, 7, v4")
    a("v_add_u32 v4, s24, v4")
    for fk in range(4):
        a("v_add_u32 v7, %d, v5" % (2 * fk))
        a("v_xor_b32 v7, v7, v6")
        a("v_lshl_add_u32 v%d, v7, 4, v4" % (8 + fk))
    a("v_lshlrev_b32 v12, 4, v1")
    a("v_add_u32 v13, s24, v12")
    a("s_and_b32 s25, s12, 1")
    a("s_lshl_b32 s26, s9, 1")
    a("s_add_u32 s25, s25, s26")
    a("s_mul_i32 s25, s25, 22")
    a("s_lshl_b32 s26, s8, 1")
    a("s_add_u32 s25, s25, s26")
    a("s_lshr_b32 s26, s12, 1")
    a("s_add_u32 s25, s25, s26")
    a("s_lshl_b32 s25, s25, 13")
    a("s_add_u32 s25, s25, %d" % H_OFF)
    a("v_add_u32 v12, s25, v12")
    a("v_add_u32 v14, 4096, v12")
    for lt in range(2):
        for ft in range(2):
            acc = ACC + 16 * (2 * lt + ft)
            for r in range(16):
                a("v_max_f32 v%d, 0, v%d" % (acc + r, acc + r))
            o = FR + 8 * (2 * ft + lt)
            for rg in range(4):
                r = acc + 4 * rg
                a("v_cvt_pk_bf16_f32 v%d, v%d, v%d" % (o + 2 * rg, r, r + 1))
                a("v_cvt_pk_bf16_f32 v%d, v%d, v%d" % (o + 2 * rg + 1, r + 2, r + 3))
            for k in range(2):
                a("v_permlane32_swap_b32 v%d, v%d" % (o + 4 * k, o + 4 * k + 2))
                a("v_permlane32_swap_b32 v%d, v%d" % (o + 4 * k + 1, o + 4 * k + 3))
            for k in range(2):
                a("ds_write_b128 v%d, v[%d:%d] offset:%d" % (8 + 2 * ft + k, o + 4 * k, o + 4 * k + 3, 4096 * lt))
        a("s_waitcnt lgkmcnt(0)")
        for i in range(4):
            r = ACC + 32 * lt + 4 * i
            a("ds_read_b128 v[%d:%d], v13 offset:%d" % (r, r + 3, 4096 * lt + 1024 * i))
        for i in range(4):
            r = ACC + 32 * lt + 4 * i
            a("s_waitcnt lgkmcnt(%d)" % (3 - i))
            a("global_store_dwordx4 v%d, v[%d:%d], s[6:7] offset:%d" % (12 if lt == 0 else 14, r, r + 3, 1024 * i))
    a.label("L_g1_done")
    dump(a, "g1", 5, 0)
    a("s_endpgm")


def gen_k2(a):
    a.raw(".p2align 8")
    a.raw(".type mid_kernel,@function")
    a.label("mid_kernel")
    a("s_cmp_ge_u32 s2, %d" % (176 if os.environ.get("NOCONV") else 512))
    a("s_cbranch_scc1 L_k2_exit")
    a("s_cmp_ge_u32 s2, 176")
    a("s_cbranch_scc1 L_k2_conv")
    gen_gemm1(a)
    a.label("L_k2_conv")
    a.flush_hazards(4)
    a("s_sub_u32 s28, s2, 176")
    gen_conv(a)
    a.label("L_k2_exit")
    a("s_endpgm")


def gen_gemm2(a):
    NST = 6
    STG = 16384
    NCH = 22
    XT = NST * STG
    ATT = XT + 8192
    a("; ---------------- GEMM2 ----------------")
    stamp(a, 0)
    a("s_load_dwordx2 s[4:5], s[0:1], 88")
    a("s_load_dwordx2 s[6:7], s[0:1], 112")
    a("s_load_dwordx2 s[28:29], s[0:1], 0")
    a("s_load_dwordx2 s[30:31], s[0:1], 96")
    a("s_and_b32 s9, s2, 7")
    a("s_lshr_b32 s8, s2, 5")
    a("s_bfe_u32 s10, s2, 0x20003")
    a("s_lshl_b32 s9, s9, 2")
    a("s_add_u32 s9, s9, s10")
    a("s_lshl_b32 s10, s8, 7")
    a("s_mul_i32 s11, s9, %d" % (22 * 8192))
    a("v_and_b32 v1, 63, v0")
    a("v_lshrrev_b32 v2, 6, v0")
    a("v_readfirstlane_b32 s12, v2")
    a("v_and_b32 v2, 3, v2")
    a("v_lshrrev_b32 v4, 3, v1")
    a("v_and_b32 v5, 7, v1")
    a("v_xor_b32 v6, v4, v5")
    a("v_lshl_add_u32 v4, v2, 4, v4")
    a("s_lshl_b32 s24, s9, 16")
    a("s_add_u32 s24, s24, s10")
    a("v_lshlrev_b32 v22, 10, v4")
    a("v_lshl_add_u32 v22, v6, 4, v22")
    a("v_add_u32 v22, s24, v22")
    a("s_and_b32 s13, s12, 3")
    a("s_lshl_b32 s13, s13, 11")
    a("s_cmp_lt_u32 s12, 4")
    a("s_cbranch_scc1 L_g2_comp")
    a("v_lshlrev_b32 v3, 4, v1")
    a("v_add_u32 v3, s13, v3")
    a("v_add_u32 v8, s11, v3")
    a("v_lshlrev_b32 v6, 1, v4")
    a("v_and_b32 v6, 4, v6")
    a("v_xor_b32 v6, v6, v5")
    a("v_lshlrev_b32 v7, 10, v4")
    a("v_lshl_add_u32 v7, v6, 4, v7")
    a("v_add_u32 v10, s10, v7")
    a("v_add_u32 v11, %d, v10" % (8192 - 1024))
    a("v_add_u32 v23, %d, v22" % (8192 - 1024))
    a("s_lshl_b32 s24, s8, 18")
    a("s_lshl_b32 s25, s9, 7")
    a("s_add_u32 s24, s24, s25")
    a("s_add_u32 s24, s24, %d" % AT_OFF)
    a("v_lshlrev_b32 v24, 12, v4")
    a("v_lshl_add_u32 v24, v5, 4, v24")
    a("v_add_u32 v24, s24, v24")
    a("v_add_u32 v25, %d, v24" % (8 * 4096 - 1024))
    a("s_waitcnt lgkmcnt(0)")
    a("s_mov_b32 s16, s6")
    a("s_and_b32 s17, s7, 0xffff")
    a("s_mov_b32 s18, %d" % (H_OFF + H_BYTES))
    a("s_mov_b32 s19, 0x00020000")
    a("s_mov_b32 s20, s4")
    a("s_and_b32 s21, s5, 0xffff")
    a("s_mov_b32 s22, %d" % (1376 * 1024))
    a("s_mov_b32 s23, 0x00020000")
    a("s_mov_b32 s32, s28")
    a("s_and_b32 s33, s29, 0xffff")
    a("s_mov_b32 s34, %d" % (2 * MB))
    a("s_mov_b32 s35, 0x00020000")
    ops = []

    def dma(c):
        st = (c % NST) * STG
        a("s_mov_b32 s25, %d" % (H_OFF + 8192 * c))
        a("s_add_u32 s24, s13, %d" % st)
        a("s_mov_b32 m0, s24")
        a("s_mov_b32 s26, %d" % (65536 * c))
        a("s_add_u32 s27, s13, %d" % (st + 8192))
        for jj in range(2):
            a("buffer_load_dwordx4 v8, s[16:19], s25 offen offset:%d lds" % (1024 * jj))
        a("s_mov_b32 m0, s27")
        a("buffer_load_dwordx4 v10, s[20:23], s26 offen lds")
        a("buffer_load_dwordx4 v11, s[20:23], s26 offen offset:1024 lds")
        ops.extend([c] * 4)

    def extra():
        a("s_add_u32 s24, s13, %d" % XT)
        a("s_mov_b32 m0, s24")
        a("s_add_u32 s27, s13, %d" % ATT)
        a("buffer_load_dwordx4 v22, s[32:35], 0 offen lds")
        a("buffer_load_dwordx4 v23, s[32:35], 0 offen offset:1024 lds")
        a("s_mov_b32 m0, s27")
        a("buffer_load_dwordx4 v24, s[16:19], 0 offen lds")
        a("buffer_load_dwordx4 v25, s[16:19], 0 offen offset:1024 lds")
        ops.extend([-1] * 4)
    issued = 2
    dma(0)
    dma(1)
    for c in range(NCH):
        last = max(i for i, t in enumerate(ops) if t == c)
        a("s_waitcnt vmcnt(%d)" % (len(ops) - 1 - last))
        a("s_barrier")
        n = 0
        while issued < NCH and issued <= c + NST - 1 and n < 2:
            dma(issued)
            issued += 1
            n += 1
        if c == 10:
            extra()
    a("s_endpgm")
    a.label("L_g2_comp")
    a.flush_hazards(4)
    a("v_and_b32 v4, 31, v1")
    a("v_lshrrev_b32 v5, 5, v1")
    a("v_and_b32 v6, 1, v2")
    a("v_lshl_add_u32 v4, v6, 5, v4")
    a("v_lshrrev_b32 v6, 1, v4")
    a("v_and_b32 v6, 7, v6")
    for s in range(4):
        a("v_add_u32 v7, %d, v5" % (2 * s))
        a("v_xor_b32 v7, v7, v6")
        a("v_lshlrev_b32 v7, 4, v7")
        a("v_lshl_add_u32 v%d, v4, 7, v7" % (12 + s))
        a("v_add_u32 v%d, %d, v%d" % (16 + s, 3 * STG, 12 + s))
    a("v_lshrrev_b32 v3, 1, v2")
    a("v_and_b32 v6, 7, v4")
    a("v_lshlrev_b32 v8, 7, v4")
    a("v_lshl_add_u32 v8, v5, 3, v8")
    a("v_add_u32 v8, %d, v8" % XT)
    for rg in range(4):
        a("v_lshl_add_u32 v7, v3, 2, %d" % rg)
        a("v_xor_b32 v7, v7, v6")
        a("v_lshl_add_u32 v%d, v7, 4, v8" % (24 + rg))
    a("v_lshlrev_b32 v28, 5, v3")
    a("v_lshl_add_u32 v28, v5, 2, v28")
    a("v_lshlrev_b32 v28, 7, v28")
    a("v_lshl_add_u32 v28, v4, 1, v28")
    a("v_add_u32 v28, %d, v28" % ATT)
    a("v_lshlrev_b32 v29, 4, v1")
    a("v_add_u32 v29, s13, v29")
    a("v_add_u32 v29, %d, v29" % XT)
    a("v_and_b32 v4, 15, v1")
    a("v_lshrrev_b32 v5, 4, v1")
    a("v_lshrrev_b32 v6, 1, v5")
    a("v_lshrrev_b32 v7, 2, v4")
    a("v_lshl_add_u32 v7, v6, 3, v7")
    a("v_lshlrev_b32 v7, 7, v7")
    a("v_and_b32 v6, 1, v4")
    a("v_lshl_add_u32 v7, v6, 3, v7")
    a("v_add_u32 v7, 8192, v7")
    a("v_and_b32 v5, 1, v5")
    a("v_lshlrev_b32 v5, 1, v5")
    a("v_bfe_u32 v6, v4, 1, 1")
    a("v_add_u32 v5, v5, v6")
    a("v_lshl_add_u32 v5, v3, 2, v5")
    a("v_lshrrev_b32 v6, 1, v4")
    a("v_and_b32 v6, 4, v6")
    a("v_xor_b32 v5, v5, v6")
    a("v_lshl_add_u32 v20, v5, 4, v7")
    a("v_add_u32 v21, %d, v20" % (3 * STG))
    ACC = 32
    FR = 48
    for r in range(ACC, ACC + 16):
        a("v_mov_b32 v%d, 0" % r)

    def reads(c):
        stn = c % NST
        hi = stn >= 3
        st = (stn - 3 if hi else stn) * STG
        out = []
        for s in range(4):
            b = FR + 32 * (c & 1) + 8 * s
            out.append("ds_read_b128 v[%d:%d], v%d offset:%d" % (b, b + 3, (16 if hi else 12) + s, st))
            for jh in range(2):
                r = b + 4 + 2 * jh
                out.append("ds_read_b64_tr_b16 v[%d:%d], v%d offset:%d" % (r, r + 1, 21 if hi else 20, st + s * 2048 + jh * 512))
        return out

    def mfmas(c):
        out = []
        for s in range(4):
            b = FR + 32 * (c & 1) + 8 * s
            out.append("v_mfma_f32_32x32x16_bf16 v[%d:%d], v[%d:%d], v[%d:%d], v[%d:%d]" % (
                ACC, ACC + 15, b + 4, b + 7, b, b + 3, ACC, ACC + 15))
        return out
    for c in range(NCH):
        a("s_waitcnt lgkmcnt(0)")
        a("s_barrier")
        if c in (0, 1, 11):
            stamp(a, {0: 1, 1: 2, 11: 3}[c])
        R = reads(c)
        M = mfmas(c - 1) if c > 0 else []
        for k in range(4):
            for x in R[3 * k:3 * k + 3]:
                a(x)
            if M:
                a(M[k])
    XR = 112
    ATR = FR + 32 * ((NCH - 2) & 1)
    for rg in range(4):
        a("ds_read_b64 v[%d:%d], v%d" % (XR + 2 * rg, XR + 2 * rg + 1, 24 + rg))
    a("s_waitcnt lgkmcnt(4)")
    M = mfmas(NCH - 1)
    a(M[0])
    for rg in range(4):
        for r in range(4):
            a("ds_read_u16 v%d, v28 offset:%d" % (ATR + 4 * rg + r, (8 * rg + r) * 128))
    for x in M[1:]:
        a(x)
    stamp(a, 4)
    T = ATR + 16
    SA = 120
    for rg in range(4):
        a("s_waitcnt lgkmcnt(%d)" % (12 - 4 * rg))
        x = XR + 2 * rg
        a("v_lshlrev_b32 v%d, 16, v%d" % (T + 2, x))
        a("v_and_b32 v%d, 0xffff0000, v%d" % (T + 3, x))
        a("v_lshlrev_b32 v%d, 16, v%d" % (T + 4, x + 1))
        a("v_and_b32 v%d, 0xffff0000, v%d" % (T + 5, x + 1))
        for k in range(4):
            a("v_lshlrev_b32 v%d, 16, v%d" % (ATR + 4 * rg + k, ATR + 4 * rg + k))
        for k in range(4):
            a("v_add_f32 v%d, v%d, v%d" % (T + 2 + k, T + 2 + k, ATR + 4 * rg + k))
        a("v_cvt_pk_bf16_f32 v%d, v%d, v%d" % (SA + 2 * rg, T + 2, T + 3))
        a("v_cvt_pk_bf16_f32 v%d, v%d, v%d" % (SA + 2 * rg + 1, T + 4, T + 5))
    for rg in range(4):
        r = ACC + 4 * rg
        a("v_cvt_pk_bf16_f32 v%d, v%d, v%d" % (T, r, r + 1))
        a("v_cvt_pk_bf16_f32 v%d, v%d, v%d" % (T + 1, r + 2, r + 3))
        a("v_lshlrev_b32 v%d, 16, v%d" % (T + 2, SA + 2 * rg))
        a("v_and_b32 v%d, 0xffff0000, v%d" % (T + 3, SA + 2 * rg))
        a("v_lshlrev_b32 v%d, 16, v%d" % (T + 4, SA + 2 * rg + 1))
        a("v_and_b32 v%d, 0xffff0000, v%d" % (T + 5, SA + 2 * rg + 1))
        a("v_lshlrev_b32 v%d, 16, v%d" % (T + 8, T))
        a("v_and_b32 v%d, 0xffff0000, v%d" % (T + 9, T))
        a("v_lshlrev_b32 v%d, 16, v%d" % (T + 10, T + 1))
        a("v_and_b32 v%d, 0xffff0000, v%d" % (T + 11, T + 1))
        for k in range(4):
            a("v_add_f32 v%d, v%d, v%d" % (T + 2 + k, T + 2 + k, T + 8 + k))
        o = XR + 2 * rg
        a("v_cvt_pk_bf16_f32 v%d, v%d, v%d" % (o, T + 2, T + 3))
        a("v_cvt_pk_bf16_f32 v%d, v%d, v%d" % (o + 1, T + 4, T + 5))
        a("ds_write_b64 v%d, v[%d:%d]" % (24 + rg, o, o + 1))
    a("s_waitcnt lgkmcnt(0)")
    a("s_barrier")
    a("ds_read_b128 v[32:35], v29")
    a("ds_read_b128 v[36:39], v29 offset:1024")
    a("v_add_u32 v23, 8192, v22")
    a("s_waitcnt lgkmcnt(1)")
    a("global_store_dwordx4 v22, v[32:35], s[30:31]")
    a("s_waitcnt lgkmcnt(0)")
    a("global_store_dwordx4 v23, v[36:39], s[30:31]")
    dump(a, "g2", 5, 0)
    a("s_endpgm")


def gen_k3(a):
    a.raw(".p2align 8")
    a.raw(".type fin_kernel,@function")
    a.label("fin_kernel")
    a("s_cmp_ge_u32 s2, 256")
    a("s_cbranch_scc1 L_k3_exit")
    gen_gemm2(a)
    a.label("L_k3_exit")
    a("s_endpgm")


def desc(name, vgpr, sgpr=64 if DEBUG else 40):
    return """.amdhsa_kernel %s
  .amdhsa_next_free_vgpr %d
  .amdhsa_next_free_sgpr %d
  .amdhsa_accum_offset %d
  .amdhsa_group_segment_fixed_size 0
  .amdhsa_kernarg_size 120
  .amdhsa_user_sgpr_count 2
  .amdhsa_user_sgpr_kernarg_segment_ptr 1
  .amdhsa_system_sgpr_workgroup_id_x 1
.end_amdhsa_kernel
""" % (name, vgpr, sgpr, (vgpr + 3) // 4 * 4)


def main():
    ref = open(os.path.join(os.path.dirname(os.path.abspath(__file__)), "..", "cdna_kernels", NAME + ".s.ref")).read()
    head = []
    for line in ref.split("\n"):
        if line.startswith("; @launch") or line.startswith("; Override") or line.startswith("; grid="):
            continue
        if line.startswith(";"):
            head.append(line)
        else:
            break
    out = "\n".join(head) + "\n"
    out += "; @launch kernel=prep_kernel grid=(1344,1,1) block=(256,1,1) lds=17408\n"
    out += "; @launch kernel=mid_kernel grid=(512,1,1) block=(512,1,1) lds=81920\n"
    out += "; @launch kernel=fin_kernel grid=(256,1,1) block=(512,1,1) lds=114688\n"
    out += '.amdgcn_target "amdgcn-amd-amdhsa--gfx950"\n.text\n'
    out += ".globl prep_kernel\n.globl mid_kernel\n.globl fin_kernel\n"
    for g in (gen_k1, gen_k2, gen_k3):
        a = Asm()
        g(a)
        out += a.text()
    out += '.section .rodata,"a"\n.p2align 6\n'
    out += desc("prep_kernel", 120)
    out += ".p2align 6\n" + desc("mid_kernel", 128)
    out += ".p2align 6\n" + desc("fin_kernel", 128)
    path = os.path.join(os.path.dirname(os.path.abspath(__file__)), "..", "cdna_kernels", NAME + ".s")
    if DEBUG:
        path = os.path.join(os.path.dirname(os.path.abspath(__file__)), "dbg.s")
    if os.environ.get("OUT"):
        path = os.environ["OUT"]
    open(path, "w").write(out)
    print("wrote", path, len(out))


if __name__ == "__main__":
    main()
```
